```python
import torch

def _softmax(x, axis=-1):
    return torch.softmax(x, dim=axis)
def _gelu(x):
    return torch.nn.functional.gelu(x, approximate="tanh")
def _silu(x):
    return torch.nn.functional.silu(x)
def _sigmoid(x):
    return torch.sigmoid(x)
def _layernorm(x, axis=-1, eps=1e-5):
    m = x.mean(dim=axis, keepdim=True)
    v = x.var(dim=axis, keepdim=True, unbiased=False)
    return (x - m) / torch.sqrt(v + eps)
def _scatter_add(tgt, idx, src, axis=0):
    return tgt.clone().index_add_(axis, idx, src)
def _segment_sum(src, seg, n):
    out = torch.zeros((n,) + src.shape[1:], dtype=src.dtype)
    return out.index_add_(0, seg, src)
def _pad(x, pw):
    flat = tuple(v for pair in reversed(pw) for v in pair)
    return torch.nn.functional.pad(x, flat)

kernel_name = 'recurrent_scan__spectral_fnet__geglu_ffn__prompt'

def setup_inputs():

    _w = (lambda a: (lambda t: t.to(torch.bfloat16) if t.is_floating_point() else t)(torch.as_tensor(a)))
    def _A_setup():
        B, S, D = 1, 2048, 448
        ns = torch.arange(S)[:, None] * torch.arange(S)[None, :]
        nd = torch.arange(D)[:, None] * torch.arange(D)[None, :]
        Ws_re = torch.cos(-2.0 * torch.pi * ns / S).to(float)
        Ws_im = torch.sin(-2.0 * torch.pi * ns / S).to(float)
        Wd_re = torch.cos(-2.0 * torch.pi * nd / D).to(float)
        Wd_im = torch.sin(-2.0 * torch.pi * nd / D).to(float)
        return {
            "x": _w((lambda *s: torch.randn(*s, dtype=torch.bfloat16) * 0.05)(B, S, D)),
            "dft_seq_re": _w(Ws_re),
            "dft_seq_im": _w(Ws_im),
            "dft_hid_re": _w(Wd_re),
            "dft_hid_im": _w(Wd_im),
        }
    _A_in = _A_setup()

    def _B_setup():
        B, S, D, F = 1, 2048, 448, 1792
        return {
            "x": _w((lambda *s: torch.randn(*s, dtype=torch.bfloat16) * 0.05)(B, S, D)),
            "w_gate": _w((lambda *s: torch.randn(*s, dtype=torch.bfloat16) * 0.05)(D, F)),
            "w_up": _w((lambda *s: torch.randn(*s, dtype=torch.bfloat16) * 0.05)(D, F)),
            "w_down": _w((lambda *s: torch.randn(*s, dtype=torch.bfloat16) * 0.05)(F, D)),
        }
    _B_in = _B_setup()

    return {
        "A_x": _A_in["x"],
        "A_dft_seq_re": _A_in["dft_seq_re"],
        "A_dft_seq_im": _A_in["dft_seq_im"],
        "A_dft_hid_re": _A_in["dft_hid_re"],
        "A_dft_hid_im": _A_in["dft_hid_im"],
        "B_x": _B_in["x"],
        "B_w_gate": _B_in["w_gate"],
        "B_w_up": _B_in["w_up"],
        "B_w_down": _B_in["w_down"],
    }

def reference(A_x, A_dft_seq_re, A_dft_seq_im, A_dft_hid_re, A_dft_hid_im, B_x, B_w_gate, B_w_up, B_w_down):
    def _A_ref(x, dft_seq_re, dft_seq_im, dft_hid_re, dft_hid_im):
        a = torch.einsum("bsd,ed->bse", x, dft_hid_re)
        b = torch.einsum("bsd,ed->bse", x, dft_hid_im)
        y = torch.einsum("ts,bse->bte", dft_seq_re, a) - torch.einsum("ts,bse->bte", dft_seq_im, b)
        return y

    def _B_ref(x, w_gate, w_up, w_down):
        return (_gelu(x @ w_gate) * (x @ w_up)) @ w_down

    x = A_x
    xn = _layernorm(x, axis=-1)
    s = _A_ref(xn, A_dft_seq_re, A_dft_seq_im, A_dft_hid_re, A_dft_hid_im)
    g = _silu(_B_ref(xn, B_w_gate, B_w_up, B_w_down))
    return x + s * g
```

```python
import re

TRANS = ("v_exp_f32", "v_log_f32", "v_rcp_f32", "v_rsq_f32", "v_sqrt_f32", "v_sin_f32", "v_cos_f32")

def _regs(tok):
    tok = tok.strip()
    tok = tok.lstrip("-")
    if tok.startswith("abs(") or tok.startswith("|"):
        tok = tok.replace("abs(", "").replace(")", "").replace("|", "")
    m = re.fullmatch(r"([vsa])(\d+)", tok)
    if m: return m.group(1), {int(m.group(2))}
    m = re.fullmatch(r"([vsa])\[(\d+):(\d+)\]", tok)
    if m: return m.group(1), set(range(int(m.group(2)), int(m.group(3)) + 1))
    if tok == "vcc": return "s", {106, 107}
    if tok == "vcc_lo": return "s", {106}
    if tok == "vcc_hi": return "s", {107}
    if tok == "m0": return "s", {124}
    if tok == "exec": return "s", {126, 127}
    return None, set()

class Ins:
    __slots__ = ("text", "op", "cls", "vw", "vr", "sw", "sr", "srcc", "ab", "dpp", "wide_data", "ws")

def parse(text):
    t = text.split(";")[0].strip()
    t = re.sub(r"\s(op_sel|op_sel_hi|neg_lo|neg_hi):\[[^\]]*\]", "", t)
    op, _, rest = t.partition(" ")
    ops = [x.strip() for x in rest.split(",")] if rest.strip() else []
    mods = ""
    if ops:
        parts = ops[-1].split()
        ops[-1] = parts[0] if parts else ""
        mods = " ".join(parts[1:])
    I = Ins(); I.text = text; I.op = op
    I.vw = set(); I.vr = set(); I.sw = set(); I.sr = set(); I.srcc = set(); I.ab = set()
    I.dpp = ("_dpp" in op) or ("row_" in mods) or ("quad_perm" in mods)
    I.wide_data = set(); I.ws = 1
    def rd(tok):
        k, r = _regs(tok)
        if k == "v": I.vr |= r
        elif k == "s": I.sr |= r
    def wr(tok):
        k, r = _regs(tok)
        if k == "v": I.vw |= r
        elif k == "s": I.sw |= r
    if op.startswith("v_mfma"):
        I.cls = "mfma"; wr(ops[0]); rd(ops[1]); rd(ops[2]); rd(ops[3])
        I.ab = _regs(ops[1])[1] | _regs(ops[2])[1]
        if _regs(ops[3])[0] == "v": I.srcc = _regs(ops[3])[1]
    elif op.startswith("v_"):
        I.cls = "valu"
        if op.startswith("v_permlane") and "swap" in op:
            for o in ops[:2]: rd(o); wr(o)
        elif op.startswith("v_cmp"):
            wr(ops[0]); [rd(o) for o in ops[1:]]
        elif op.startswith(("v_add_co", "v_sub_co", "v_addc_co")):
            wr(ops[0]); wr(ops[1]); [rd(o) for o in ops[2:]]
        else:
            wr(ops[0]); [rd(o) for o in ops[1:]]
            if op.startswith(("v_fmac", "v_dot2c", "v_writelane")) or I.dpp: rd(ops[0])
    elif op.startswith("ds_"):
        I.cls = "ds"
        if op.startswith("ds_read") or op.startswith("ds_bpermute") or op.startswith("ds_swizzle"):
            wr(ops[0]); [rd(o) for o in ops[1:]]
        else:
            [rd(o) for o in ops]
    elif op.startswith("buffer_") or op.startswith("global_"):
        I.cls = "vmem"
        lds = (" lds" in (" " + mods)) or "_lds_" in op
        if op in ("buffer_inv", "buffer_wbl2"):
            pass
        elif lds:
            [rd(o) for o in ops]; I.sr |= {124}; I.cls = "dma"
        elif "_load_" in op:
            wr(ops[0]); [rd(o) for o in ops[1:]]
            if "d16" in op: rd(ops[0])
        else:
            [rd(o) for o in ops]
            if "x4" in op or "x3" in op:
                I.wide_data = _regs(ops[0] if op.startswith("buffer_") else ops[1])[1]
    elif op.startswith("s_"):
        I.cls = "salu"
        if op == "s_nop": I.ws = int(ops[0], 0) + 1
        elif op.startswith(("s_cmp", "s_cbranch", "s_branch", "s_waitcnt", "s_barrier", "s_sleep", "s_setprio", "s_endpgm", "s_bitcmp")):
            [rd(o) for o in ops]
        else:
            wr(ops[0]); [rd(o) for o in ops[1:]]
            if "saveexec" in op: I.sw |= {126, 127}
    else:
        raise ValueError("unknown op " + text)
    return I

def need(P, C):
    n = 0
    if P.cls == "valu":
        if C.cls == "mfma" and (P.vw & C.vr): n = max(n, 2)
        if C.cls == "valu":
            if C.dpp and (P.vw & C.vr): n = max(n, 2)
            if C.op.startswith("v_permlane") and (P.vw & C.vr): n = max(n, 2)
            if C.op.startswith(("v_readlane", "v_readfirstlane")) and (P.vw & C.vr): n = max(n, 1)
            if P.op.split("_e")[0] in TRANS and (P.vw & (C.vr | C.vw)): n = max(n, 1)
            if P.op.startswith("v_dot") and (P.vw & (C.vr | C.vw)) and C.op != P.op: n = max(n, 3)
            if P.sw & C.sr: n = max(n, 4 if C.op.startswith(("v_readlane", "v_writelane")) else 2)
        if P.op.startswith("v_dot") and C.cls in ("ds", "vmem", "dma") and (P.vw & (C.vr | C.vw)): n = max(n, 3)
        if P.op.split("_e")[0] in TRANS and C.cls in ("ds", "vmem", "dma") and (P.vw & C.vr): n = max(n, 1)
        if C.cls in ("vmem", "dma") and (P.sw & C.sr): n = max(n, 5)
        if C.cls == "salu" and ((P.sw & C.sr) or (C.op.startswith("s_cbranch_vcc") and P.sw & {106, 107})): n = max(n, 2)
    if P.cls == "mfma":
        if C.cls == "mfma":
            if P.vw & C.ab: n = max(n, 12)
            if (P.vw & C.srcc) and (P.vw != C.srcc or P.op != C.op): n = max(n, 10)
            if (P.vw & C.vw) and not (P.vw == C.srcc): n = max(n, 10)
        elif C.cls in ("valu", "ds", "vmem", "dma"):
            if P.vw & (C.vr | C.vw): n = max(n, 12)
            if C.cls == "valu" and (P.srcc & C.vw): n = max(n, 7)
    if P.cls == "salu" and C.cls == "dma" and (124 in P.sw): n = max(n, 1)
    if P.wide_data and (P.wide_data & C.vw): n = max(n, 2)
    return n

class Gen:
    def __init__(self):
        self.out = []
        self.hist = []
        self.vm = 0
        self.lg = 0
        self.vm_done = 0
        self.lg_done = 0
        self.nops = 0
        self.pend = []
    def raw(self, s): self.out.append(s)
    def label(self, name):
        self.out.append(name + ":")
    def fence(self):
        self.e("s_nop 15"); self.hist = []
    def e(self, text):
        I = parse(text)
        if I.op == "s_waitcnt":
            m = re.search(r"vmcnt\((\d+)\)", text)
            if m: self.vm_done = max(self.vm_done, self.vm - int(m.group(1)))
            m = re.search(r"lgkmcnt\((\d+)\)", text)
            if m: self.lg_done = max(self.lg_done, self.lg - int(m.group(1)))
        self.pend = [p for p in self.pend if p[1] > (self.vm_done if p[0] == "vm" else self.lg_done)]
        for p in self.pend:
            if p[2] & (I.vr | I.vw):
                raise RuntimeError(f"touching regs {sorted(p[2] & (I.vr|I.vw))} of outstanding {p[0]} load in: {text}")
        dist = 0; req = 0
        for P in reversed(self.hist):
            r = need(P, I) - dist
            if r > req: req = r
            dist += P.ws
            if dist >= 12: break
        if req > 0:
            N = parse(f"s_nop {req-1}"); self.out.append("    " + N.text); self.hist.append(N); self.nops += 1
        self.out.append("    " + text); self.hist.append(I)
        if len(self.hist) > 24: self.hist = self.hist[-24:]
        if I.cls in ("vmem", "dma"):
            self.vm += 1
            if I.vw: self.pend.append(("vm", self.vm, set(I.vw)))
            return ("vm", self.vm)
        if I.cls == "ds":
            self.lg += 1
            if I.vw: self.pend.append(("lg", self.lg, set(I.vw)))
            return ("lg", self.lg)
        return None
    def wait(self, *toks):
        v = [t[1] for t in toks if t and t[0] == "vm" and t[1] > self.vm_done]
        l = [t[1] for t in toks if t and t[0] == "lg" and t[1] > self.lg_done]
        parts = []
        if v:
            n = min(self.vm - max(v), 63); parts.append(f"vmcnt({n})"); self.vm_done = self.vm - n
        if l:
            n = min(self.lg - max(l), 15); parts.append(f"lgkmcnt({n})"); self.lg_done = self.lg - n
        if parts: self.e("s_waitcnt " + " ".join(parts))
    def wait_all(self, vm=True, lg=True):
        parts = []
        if vm: parts.append("vmcnt(0)"); self.vm_done = self.vm
        if lg: parts.append("lgkmcnt(0)"); self.lg_done = self.lg
        self.e("s_waitcnt " + " ".join(parts))
    def lastvm(self): return ("vm", self.vm)
    def lastlg(self): return ("lg", self.lg)
    def snapshot(self): return (list(self.hist), self.vm, self.lg, self.vm_done, self.lg_done, list(self.pend))
    def restore(self, s): self.hist, self.vm, self.lg, self.vm_done, self.lg_done, self.pend = list(s[0]), s[1], s[2], s[3], s[4], list(s[5])
def vr(b, n): return f"v[{b}:{b+n-1}]" if n > 1 else f"v{b}"
def sr(b, n): return f"s[{b}:{b+n-1}]" if n > 1 else f"s{b}"
```

```python
import sys
from asmgen import *

STAMPS = "--stamps" in sys.argv
OUT = [a for a in sys.argv[1:] if not a.startswith("--")]
OUT = OUT[0] if OUT else "k.s"
KN = "recurrent_scan__spectral_fnet__geglu_ffn__prompt_kernel"

H_OFF, Z_OFF, Y_OFF, ST_OFF = 0, 0x700000, 0x900000, 0xA00000
XM, XS_, XR, XQ = ST_OFF, ST_OFF + 0x2000, ST_OFF + 0x4000, ST_OFF + 0x6000
TS_OFF = ST_OFF + 0x8000
WS_SIZE = ST_OFF + 0x10000
GAM, STG, XB, MISC = 49152, 16384, 98304, 147456
BIG = 0x7F000000

g = Gen(); e = g.e
sW, sRB, sCB, sT0, sT1, sXO, sWK, sF1, sMW, sMX, sT2, sT3, sT4 = 3, 4, 5, 6, 7, 8, 9, 10, 11, 12, 13, 14, 15
pX, pCS, pSS, pCD, pSD, pWG, pWU, pWD, pOUT, pDBG, pWS = 16, 18, 20, 22, 24, 28, 30, 32, 34, 36, 38
SX, SW0, SW1, SWD, SWS, SO, SD = 40, 44, 48, 52, 56, 60, 64
sPC = 68
sR2, sC2, sFLAG, sK0, sK1, sSPIN, sHO = 70, 71, 72, 73, 74, 75, 76
sST = 80
nstamp = [0]
def stamp(i):
    if not STAMPS: return
    e("s_memrealtime s[100:101]"); g.wait_all(vm=False); e(f"s_mov_b32 s{sST+i}, s100")
def srd(b, p, size):
    e(f"s_mov_b32 s{b}, s{p}"); e(f"s_and_b32 s{b+1}, s{p+1}, 0xffff")
    e(f"s_mov_b32 s{b+2}, {size}"); e(f"s_mov_b32 s{b+3}, 0x20000")
def S4(b): return sr(b, 4)

vL = 0
vXD0, vXD1 = 1, 2
vWD0, vWD1 = 3, 4
vXR = 5
vWR = 9
vSW = 13
vL16 = 14
vL4 = 15
vMASK = 16
vPOLL = 17
vCS0, vCS1 = 18, 19
vT = 20
vTR = 30
ACC, XF, WF = 64, 128, 144
def acc(ui, si): return ACC + (ui * 2 + si) * 16
def xf(s, si): return XF + s * 8 + si * 4
def wf(s, ui): return WF + s * 8 + ui * 4

spin_id = [0]
def poll_issue():
    return e(f"buffer_load_dword v{vPOLL}, v{vL4}, {S4(SD)}, 0 offen sc1")
def poll_check(tok):
    n = spin_id[0]; spin_id[0] += 1
    g.wait(tok)
    e(f"v_and_b32 v{vPOLL}, v{vPOLL}, v{vMASK}")
    e(f"v_cmp_ne_u32 vcc, v{vPOLL}, v{vMASK}")
    e(f"s_cbranch_vccz L_ok{n}")
    snap = g.snapshot()
    e(f"s_mov_b32 s{sSPIN}, 0x20000")
    g.label(f"L_spin{n}")
    e(f"buffer_load_dword v{vPOLL}, v{vL4}, {S4(SD)}, 0 offen sc1")
    e("s_waitcnt vmcnt(0)")
    e(f"v_and_b32 v{vPOLL}, v{vPOLL}, v{vMASK}")
    e(f"v_cmp_ne_u32 vcc, v{vPOLL}, v{vMASK}")
    e(f"s_cbranch_vccz L_ok{n}")
    e(f"s_sub_u32 s{sSPIN}, s{sSPIN}, 1")
    e(f"s_cmp_lg_u32 s{sSPIN}, 0")
    e(f"s_cbranch_scc1 L_spin{n}")
    g.label(f"L_ok{n}")
    g.restore(snap)
def flag_store(val):
    n = spin_id[0]; spin_id[0] += 1
    e(f"s_cmp_lg_u32 s{sW}, 0")
    e(f"s_cselect_b32 s{sT0}, 0x1000, s{sFLAG}")
    e(f"v_mov_b32 v{vT+8}, {val}")
    e(f"v_lshlrev_b32 v{vT+9}, 12, v{vL}")
    return e(f"buffer_store_byte v{vT+8}, v{vT+9}, {S4(SD)}, s{sT0} offen sc1")
def bf16r(d, s):
    e(f"v_cvt_pk_bf16_f32 v{d}, v{s}, v{s}"); e(f"v_lshlrev_b32 v{d}, 16, v{d}")

hdr = open("recurrent_scan__spectral_fnet__geglu_ffn__prompt.s.ref").read().split("\n")
hdr = [l for l in hdr if l.startswith(";") and "@launch" not in l]
for l in hdr: g.raw(l)
g.raw("; @launch grid=(256,1,1) block=(512,1,1) lds=163840")
g.raw('.amdgcn_target "amdgcn-amd-amdhsa--gfx950"\n.text')
g.raw(f".globl {KN}\n.p2align 8\n.type {KN},@function\n{KN}:")
e("s_cmp_ge_u32 s2, 0x100")
e("s_cbranch_scc1 L_end")
e("s_load_dwordx16 s[16:31], s[0:1], 0")
e("s_load_dwordx8 s[32:39], s[0:1], 64")
e(f"s_getpc_b64 s[{sPC}:{sPC+1}]")
g.label("L_pc")
e(f"v_lshlrev_b32 v{vT}, 6, v0")
e(f"v_min_u32 v{vT}, L_end-L_pc, v{vT}")
e(f"global_load_dword v63, v{vT}, s[{sPC}:{sPC+1}]")
e(f"v_lshrrev_b32 v{vT+2}, 6, v0")
e(f"v_and_b32 v{vL}, 63, v0")
e(f"v_readfirstlane_b32 s{sW}, v{vT+2}")
if STAMPS:
    e("s_memrealtime s[100:101]"); g.wait_all(vm=False); e(f"s_mov_b32 s{sST}, s100")
e(f"s_and_b32 s{sT0}, s2, 7")
e(f"s_lshr_b32 s{sT1}, s2, 3")
e(f"s_and_b32 s{sT2}, s{sT0}, 1")
e(f"s_lshr_b32 s{sT3}, s{sT0}, 1")
e(f"s_mul_i32 s{sT4}, s{sT3}, 28")
e(f"s_add_u32 s{sT4}, s{sT4}, s{sT1}")
e(f"s_lshr_b32 s{sCB}, s{sT4}, 3")
e(f"s_and_b32 s{sRB}, s{sT4}, 7")
e(f"s_mul_i32 s{sR2}, s{sT1}, 37")
e(f"s_lshr_b32 s{sR2}, s{sR2}, 8")
e(f"s_mul_i32 s{sC2}, s{sR2}, 7")
e(f"s_sub_u32 s{sC2}, s{sT1}, s{sC2}")
e(f"s_lshl_b32 s{sT0}, s{sT2}, 4")
e(f"s_add_u32 s{sR2}, s{sR2}, s{sT0}")
e(f"s_lshl_b32 s{sT0}, s{sT3}, 2")
e(f"s_add_u32 s{sR2}, s{sR2}, s{sT0}")
e(f"s_and_b32 s{sT0}, s{sT3}, 1")
e(f"s_add_u32 s{sT0}, s{sT0}, 14")
e(f"s_lshr_b32 s{sT4}, s{sT3}, 1")
e(f"s_lshl_b32 s{sT4}, s{sT4}, 2")
e(f"s_add_u32 s{sT4}, s{sT4}, s{sT1}")
e(f"s_sub_u32 s{sT4}, s{sT4}, 28")
e(f"s_cmp_ge_u32 s{sT1}, 28")
e(f"s_cselect_b32 s{sCB}, s{sT0}, s{sCB}")
e(f"s_cselect_b32 s{sRB}, s{sT4}, s{sRB}")
e(f"s_lshl_b32 s{sT2}, s{sT2}, 3")
e(f"s_add_u32 s{sRB}, s{sRB}, s{sT2}")
e(f"s_lshl_b32 s{sFLAG}, s{sRB}, 4")
e(f"s_add_u32 s{sFLAG}, s{sFLAG}, s{sCB}")
e(f"v_lshlrev_b32 v{vL16}, 4, v{vL}")
e(f"v_lshlrev_b32 v{vL4}, 2, v{vL}")
e(f"v_lshrrev_b32 v{vT+2}, 3, v{vL}")
e(f"v_lshrrev_b32 v{vT+3}, 4, v{vL}")
e(f"v_and_b32 v{vT+4}, 7, v{vL}")
e(f"v_xor_b32 v{vT+4}, v{vT+4}, v{vT+3}")
e(f"v_lshlrev_b32 v{vSW}, 4, v{vT+4}")
e(f"v_mul_u32_u24 v{vXD0}, 57344, v{vT+2}")
e(f"v_add_u32 v{vXD0}, v{vXD0}, v{vSW}")
e(f"v_xor_b32 v{vXD1}, 64, v{vXD0}")
e(f"v_add_u32 v{vXD1}, {8*57344}, v{vXD1}")
e(f"s_lshr_b32 s{sT0}, s{sW}, 1")
e(f"s_lshl_b32 s{sXO}, s{sRB}, 2")
e(f"s_add_u32 s{sXO}, s{sXO}, s{sT0}")
e(f"s_mul_i32 s{sXO}, s{sXO}, 896")
e(f"s_and_b32 s{sT0}, s{sW}, 1")
e(f"s_mul_i32 s{sT0}, s{sT0}, {16*57344}")
e(f"s_add_u32 s{sXO}, s{sXO}, s{sT0}")
e(f"s_lshl_b32 s{sMX}, s{sW}, 11")
e(f"s_lshl_b32 s{sT0}, s{sCB}, 3")
e(f"s_add_u32 s{sT0}, s{sT0}, s{sW}")
e(f"s_and_b32 s{sT2}, s{sT0}, 31")
e(f"s_lshl_b32 s{sT2}, s{sT2}, 6")
e(f"s_lshr_b32 s{sT3}, s{sT0}, 5")
e(f"s_add_u32 s{sT2}, s{sT2}, s{sT3}")
e(f"s_lshl_b32 s{sT3}, s{sRB}, 2")
e(f"s_add_u32 s{sT2}, s{sT2}, s{sT3}")
e(f"s_mul_i32 s{sT2}, s{sT2}, 896")
e(f"s_lshl_b32 s{sT3}, s{sRB}, 7")
e(f"s_add_u32 s{sT3}, s{sT3}, s{sT0}")
e(f"s_lshl_b32 s{sT3}, s{sT3}, 2")
e(f"s_add_u32 s{sHO}, s{sT3}, {XM}")
e(f"v_mov_b32 v{vT+5}, {BIG}")
e(f"v_cmp_gt_u32 vcc, 56, v{vL}")
e(f"v_cndmask_b32 v{vT+5}, v{vT+5}, v{vL16}, vcc")
g.wait_all(vm=False)
srd(SX, pX, 1835008)
SR = 32
t_row = e(f"buffer_load_dwordx4 {vr(SR,4)}, v{vT+5}, {S4(SX)}, s{sT2} offen")
srd(SWS, pWS, WS_SIZE)
srd(SD, pDBG, 256)
e(f"s_cmp_ge_u32 s{sCB}, 14")
e("s_cbranch_scc1 L_dft")
snap_role = g.snapshot()

def dma(m0expr_s, m0imm, voff, srdb, soff, ioff=0, sc1=False):
    e(f"s_add_u32 m0, s{m0expr_s}, {m0imm - ioff}")
    return e(f"buffer_load_dwordx4 v{voff}, {S4(srdb)}, {soff} offen" + (f" offset:{ioff}" if ioff else "") + (" sc1" if sc1 else "") + " lds")

def stat_row():
    a, q, t = vT, vT + 1, vT + 2
    g.wait(t_row)
    e(f"s_mov_b32 s{sT0}, 0x3f803f80")
    e(f"v_mov_b32 v{a}, 0"); e(f"v_mov_b32 v{q}, 0")
    for i in range(4):
        e(f"v_dot2c_f32_bf16 v{a}, s{sT0}, v{SR+i}")
        e(f"v_dot2c_f32_bf16 v{q}, v{SR+i}, v{SR+i}")
    e(f"v_permlane32_swap_b32 v{a}, v{q}")
    e(f"v_add_f32 v{a}, v{a}, v{q}")
    e(f"v_mov_b32 v{t}, v{a}")
    e(f"v_permlane16_swap_b32 v{a}, v{t}")
    e(f"v_add_f32 v{a}, v{a}, v{t}")
    for sh in (8, 4, 2, 1):
        e(f"v_add_f32_dpp v{a}, v{a}, v{a} row_ror:{sh} row_mask:0xf bank_mask:0xf")
    e(f"v_mul_f32 v{a}, 0x3b124925, v{a}")
    e(f"v_mov_b32 v{q}, v{a}")
    e(f"v_permlane32_swap_b32 v{a}, v{q}")
    e(f"v_fma_f32 v{q}, -v{a}, v{a}, v{q}")
    e(f"v_max_f32 v{q}, 0, v{q}")
    bf16r(a, a); bf16r(q, q)
    e(f"v_add_f32 v{q}, 0x3727c5ac, v{q}")
    bf16r(q, q)
    e(f"v_sqrt_f32 v{q}, v{q}")
    bf16r(q, q)
    e(f"v_rcp_f32 v{t}, v{q}")
    e(f"v_cmp_eq_u32 vcc, 1, v{vL}")
    e(f"v_mul_f32 v{t+1}, v{a}, v{t}")
    e(f"v_cndmask_b32 v{a}, v{a}, v{q}, vcc")
    e(f"v_cmp_eq_u32 vcc, 2, v{vL}")
    e(f"v_lshlrev_b32 v{t+2}, 13, v{vL}")
    e(f"v_cndmask_b32 v{a}, v{a}, v{t}, vcc")
    e(f"v_cmp_eq_u32 vcc, 3, v{vL}")
    e(f"v_mov_b32 v{t+3}, {BIG}")
    e(f"v_cndmask_b32 v{a}, v{a}, v{t+1}, vcc")
    e(f"v_cmp_gt_u32 vcc, 4, v{vL}")
    e(f"v_cndmask_b32 v{t+2}, v{t+3}, v{t+2}, vcc")
    return e(f"buffer_store_dword v{a}, v{t+2}, {S4(SWS)}, s{sHO} offen sc1")

def x_read_addrs(perm):
    m, row, hf = vT, vT + 1, vT + 2
    e(f"v_and_b32 v{m}, 31, v{vL}")
    if perm:
        e(f"v_and_b32 v{row}, 19, v{m}")
        e(f"v_bfe_u32 v{hf}, v{m}, 2, 1"); e(f"v_lshl_or_b32 v{row}, v{hf}, 3, v{row}")
        e(f"v_bfe_u32 v{hf}, v{m}, 3, 1"); e(f"v_lshl_or_b32 v{row}, v{hf}, 2, v{row}")
    else:
        e(f"v_mov_b32 v{row}, v{m}")
    e(f"v_lshrrev_b32 v{hf}, 5, v{vL}")
    e(f"v_bfe_u32 v{vT+3}, v{row}, 1, 3")
    e(f"v_xor_b32 v{vT+3}, v{vT+3}, v{hf}")
    e(f"v_lshlrev_b32 v{vT+3}, 4, v{vT+3}")
    e(f"v_lshl_or_b32 v{vT+3}, v{row}, 7, v{vT+3}")
    return vT + 3

def phase1(dft):
    def issue_x(c, b):
        return dma(sMX, XB + (c % 3) * STG + b * 1024, vXD0 + b, SX, f"s{sXO}", ioff=c * 128)
    if not dft:
        srd(SW0, pWG, 1605632); srd(SW1, pWU, 1605632)
        rho, s8 = vT, vT + 1
        e(f"v_lshrrev_b32 v{rho}, 4, v{vL}")
        e(f"v_lshrrev_b32 v{vT+2}, 3, v{vL}")
        e(f"v_mul_u32_u24 v{vWD0}, 3584, v{vT+2}")
        e(f"v_bfe_u32 v{s8}, v{vL}, 1, 2")
        e(f"v_and_b32 v{rho}, 1, v{rho}")
        e(f"v_xor_b32 v{s8}, v{s8}, v{rho}")
        e(f"v_lshl_add_u32 v{vWD0}, v{s8}, 5, v{vWD0}")
        e(f"v_and_b32 v{s8}, 1, v{vL}")
        e(f"v_lshl_add_u32 v{vWD0}, v{s8}, 4, v{vWD0}")
        e(f"v_xor_b32 v{vWD1}, 64, v{vWD0}")
        e(f"s_mul_i32 s{sWK}, s{sW}, {8*3584}")
        e(f"s_lshl_b32 s{sT0}, s{sCB}, 8")
        e(f"s_add_u32 s{sWK}, s{sWK}, s{sT0}")
        e(f"s_mov_b32 s{sMW}, s{sMX}")
        def issue_w(c, i):
            gam, mu = i >> 1, i & 1
            t = dma(sMW, gam * GAM + (c % 3) * STG + mu * 1024, vWD0 + mu, SW0 + 4 * mu, f"s{sWK}", ioff=gam * 128)
            if i == 3: e(f"s_add_u32 s{sWK}, s{sWK}, {64*3584}")
            return t
    else:
        e(f"s_cmp_eq_u32 s{sCB}, 14")
        e(f"s_cselect_b32 s{SW0}, s{pCD}, s{pSD}")
        e(f"s_cselect_b32 s{SW0+1}, s{pCD+1}, s{pSD+1}")
        e(f"s_and_b32 s{SW0+1}, s{SW0+1}, 0xffff")
        e(f"s_mov_b32 s{SW0+2}, 401408"); e(f"s_mov_b32 s{SW0+3}, 0x20000")
        e(f"v_lshrrev_b32 v{vT}, 3, v{vL}")
        e(f"v_mul_u32_u24 v{vWD0}, 896, v{vT}")
        e(f"v_add_u32 v{vWD0}, v{vWD0}, v{vSW}")
        e(f"v_xor_b32 v{vWD1}, 64, v{vWD0}")
        e(f"v_add_u32 v{vWD1}, {8*896}, v{vWD1}")
        e(f"s_mul_i32 s{sWK}, s{sW}, {32*896}")
        e(f"s_add_u32 s{sF1}, s{sWK}, {16*896}")
        e(f"s_lshr_b32 s{sT0}, s{sW}, 2")
        e(f"s_mul_i32 s{sMW}, s{sT0}, {GAM}")
        e(f"s_and_b32 s{sT0}, s{sW}, 3")
        e(f"s_lshl_b32 s{sT0}, s{sT0}, 12")
        e(f"s_add_u32 s{sMW}, s{sMW}, s{sT0}")
        def issue_w(c, i):
            t = dma(sMW, (c % 3) * STG + i * 1024, vWD0 + (i & 1), SW0, f"s{sWK if i < 2 else sF1}")
            if i == 3:
                e(f"s_add_u32 s{sWK}, s{sWK}, 128"); e(f"s_add_u32 s{sF1}, s{sF1}, 128")
            return t
    chunk_tok = {}
    def chunk_ops(c):
        ops = [lambda b=b: issue_x(c, b) for b in range(2)] + [lambda i=i: issue_w(c, i) for i in range(4)]
        def last(): chunk_tok[c] = g.lastvm()
        return ops, last
    for c in range(3):
        ops, last = chunk_ops(c)
        for o in ops: o()
        last()
    stamp(1)
    a0 = x_read_addrs(perm=dft)
    e(f"s_and_b32 s{sT0}, s{sW}, 1")
    e(f"s_lshl_b32 s{sT1}, s{sT0}, 13")
    e(f"s_add_u32 s{sT1}, s{sT1}, {XB}")
    e(f"v_add_u32 v{vXR}, s{sT1}, v{a0}")
    for k in range(1, 4): e(f"v_xor_b32 v{vXR+k}, {k << 5}, v{vXR}")
    e(f"s_lshr_b32 s{sT1}, s{sW}, 2")
    e(f"s_mul_i32 s{sT1}, s{sT1}, {GAM}")
    e(f"s_and_b32 s{sT2}, s{sW}, 3")
    if not dft:
        t0, t1, t2 = vT, vT + 1, vT + 2
        e(f"v_lshrrev_b32 v{t0}, 4, v{vL}")
        e(f"v_lshlrev_b32 v{vTR}, 10, v{t0}")
        e(f"v_bfe_u32 v{t1}, v{vL}, 3, 1")
        e(f"v_lshl_or_b32 v{vTR}, v{t1}, 8, v{vTR}")
        e(f"v_lshl_or_b32 v{vTR}, v{t1}, 5, v{vTR}")
        e(f"v_bfe_u32 v{t1}, v{vL}, 2, 1")
        e(f"v_lshl_or_b32 v{vTR}, v{t1}, 7, v{vTR}")
        e(f"v_and_b32 v{t1}, 1, v{t0}")
        e(f"v_lshl_or_b32 v{vTR}, v{t1}, 6, v{vTR}")
        e(f"v_and_b32 v{t1}, 1, v{vL}")
        e(f"v_lshl_or_b32 v{vTR}, v{t1}, 4, v{vTR}")
        e(f"v_bfe_u32 v{t1}, v{vL}, 1, 1")
        e(f"v_lshl_or_b32 v{vTR}, v{t1}, 3, v{vTR}")
        e(f"s_lshl_b32 s{sT2}, s{sT2}, 5")
        e(f"v_xor_b32 v{vWR}, s{sT2}, v{vTR}")
        e(f"v_add_u32 v{vWR}, s{sT1}, v{vWR}")
        e(f"v_xor_b32 v{vWR+1}, 32, v{vWR}")
    else:
        a1 = x_read_addrs(perm=False)
        e(f"s_lshl_b32 s{sT2}, s{sT2}, 12")
        e(f"s_add_u32 s{sT1}, s{sT1}, s{sT2}")
        e(f"v_add_u32 v{vWR}, s{sT1}, v{a1}")
        for k in range(1, 4): e(f"v_xor_b32 v{vWR+k}, {k << 5}, v{vWR}")
        for k in range(4): e(f"v_xor_b32 v{36+k}, 4096, v{vWR+k}")
    e(f"v_mov_b32 v{vCS0}, 0"); e(f"v_mov_b32 v{vCS1}, 0")
    e(f"v_mov_b32 v{vMASK}, 0x01010101")
    t_stat = stat_row()
    stamp(2)

    def reads(t):
        c, j = divmod(t, 4); s = t & 1; st = (c % 3) * STG
        L = []
        for si in range(2):
            L.append(lambda si=si: e(f"ds_read_b128 {vr(xf(s,si),4)}, v{vXR+j} offset:{st + si*4096}"))
        for ui in range(2):
            if not dft:
                for i in range(2):
                    L.append(lambda ui=ui, i=i: e(f"ds_read_b64_tr_b16 {vr(wf(s,ui)+2*i,2)}, v{vWR+ui} offset:{st + j*4096 + i*512}"))
            else:
                L.append(lambda ui=ui: e(f"ds_read_b128 {vr(wf(s,ui),4)}, v{(vWR if ui == 0 else 36)+j} offset:{st}"))
        return L
    def mfma(t, ui, si):
        s = t & 1
        A, B = (wf(s, ui), xf(s, si)) if not dft else (xf(s, si), wf(s, ui))
        c = "0" if t == 0 else vr(acc(ui, si), 16)
        e(f"v_mfma_f32_32x32x16_bf16 {vr(acc(ui,si),16)}, {vr(A,4)}, {vr(B,4)}, {c}")
    def colsum(t, i):
        r = wf(t & 1, 0) + i
        e(f"v_lshlrev_b32 v{vT+10}, 16, v{r}")
        e(f"v_and_b32 v40, 0xffff0000, v{r}")
        e(f"v_add_f32 v{vCS0}, v{vCS0}, v{vT+10}")
        e(f"v_add_f32 v{vCS1}, v{vCS1}, v{40}")

    side = {}
    def at(t, gap, f): side.setdefault((t, gap), []).append(f)
    return dict(chunk_ops=chunk_ops, chunk_tok=chunk_tok, reads=reads, mfma=mfma, colsum=colsum, side=side, at=at, t_stat=t_stat)

def run_loop(P, extra_chunk):
    chunk_tok, side = P["chunk_tok"], P["side"]
    g.wait(chunk_tok[0]); e("s_barrier")
    stamp(3)
    for f in P["reads"](0): f()
    pend = []
    for t in range(28):
        c, j = divmod(t, 4)
        g.wait(g.lastlg())
        nxt = P["reads"](t + 1) if t < 27 else []
        order = [(0, 0), (1, 0), (0, 1), (1, 1)]
        for gap, (ui, si) in enumerate(order):
            if j == 3 and gap == 1:
                for f in side.get((t, "prebar"), []): f()
                toks = [chunk_tok[c + 1]] if c + 1 in chunk_tok and c < 6 else []
                if c == 1: toks.append(P["t_stat"])
                g.wait(*toks, g.lastlg())
                e("s_barrier")
                if c + 3 < 7:
                    ops, last = P["chunk_ops"](c + 3); pend = ops + [last]
                else:
                    pend = extra_chunk(c + 3)
            P["mfma"](t, ui, si)
            lo = 1 if j == 3 else 0
            if gap >= lo:
                k = 2 if (j != 3 or len(nxt) <= 6) else 2
                for _ in range(k):
                    if nxt: nxt.pop(0)()
            P["colsum"](t, gap)
            if pend and gap in (1, 3) and not (j == 3 and gap == 1):
                pend.pop(0)()
                if len(pend) == 1 and pend[0].__name__ == "last": pend.pop(0)()
            for f in side.get((t, gap), []): f()
        while nxt: nxt.pop(0)()
    return pend

P = phase1(dft=False)
at = P["at"]
vDD0, vDD1 = 41, 42
sD0, sD1 = sF1, 77
def wd_setup():
    srd(SWD, pWD, 1605632)
    e(f"v_lshrrev_b32 v{vT}, 3, v{vL}")
    e(f"v_mul_u32_u24 v{vDD0}, 896, v{vT}")
    e(f"v_bfe_u32 v{vT}, v{vL}, 2, 1")
    e(f"v_bfe_u32 v{vT+1}, v{vL}, 4, 1")
    e(f"v_xor_b32 v{vT}, v{vT}, v{vT+1}")
    e(f"v_lshl_add_u32 v{vDD0}, v{vT}, 6, v{vDD0}")
    e(f"v_and_b32 v{vT}, 3, v{vL}")
    e(f"v_lshl_add_u32 v{vDD0}, v{vT}, 4, v{vDD0}")
    e(f"v_add_u32 v{vDD1}, {8*896}, v{vDD0}")
    e(f"s_mul_i32 s{sD0}, s{sW}, {16*896}")
    e(f"s_lshl_b32 s{sT0}, s{sC2}, 7")
    e(f"s_add_u32 s{sD0}, s{sD0}, s{sT0}")
    e(f"s_cmp_ge_u32 s{sW}, 4")
    e(f"s_cselect_b32 s{sD1}, 60, 8")
    e(f"s_mul_i32 s{sD1}, s{sD1}, {16*896}")
    e(f"s_add_u32 s{sD1}, s{sD1}, s{sD0}")
at(9, 0, wd_setup)
def wd_dma(ldsoff, sbase, koff, b):
    e(f"s_add_u32 s{sT0}, s{sbase}, {koff*16*896}")
    return dma(sMX, ldsoff + b * 1024, vDD0 + b, SWD, f"s{sT0}")
def extra_ffn(c):
    i = c - 7; st = (c % 3) * STG
    L = []
    for b in range(2): L.append(lambda b=b: wd_dma(st, sD0, 12 * i, b))
    for b in range(2): L.append(lambda b=b: wd_dma(GAM + st, sD0, 56 + 12 * i, b))
    for b in range(2): L.append(lambda b=b: wd_dma(XB + st, sD1, 12 * i, b))
    return L
at(8, 0, lambda: flag_store(1))
tk = {}
at(14, 0, lambda: tk.__setitem__("poll", poll_issue()))
vM, vS = 44, 46
def stat_fetch():
    poll_check(tk["poll"])
    e(f"v_and_b32 v{vT}, 31, v{vL}")
    e(f"v_lshlrev_b32 v{vT}, 2, v{vT}")
    e(f"s_and_b32 s{sT0}, s{sW}, 1")
    e(f"s_lshl_b32 s{sT0}, s{sT0}, 8")
    e(f"s_lshl_b32 s{sT1}, s{sRB}, 9")
    e(f"s_add_u32 s{sT0}, s{sT0}, s{sT1}")
    e(f"s_add_u32 s{sT0}, s{sT0}, {XM}")
    e(f"s_add_u32 s{sT1}, s{sT0}, {XS_-XM}")
    for si in range(2):
        e(f"buffer_load_dword v{vM+si}, v{vT}, {S4(SWS)}, s{sT0} offen offset:{si*128} sc1")
        tk["st"] = e(f"buffer_load_dword v{vS+si}, v{vT}, {S4(SWS)}, s{sT1} offen offset:{si*128} sc1")
at(20, 0, stat_fetch)
pend = run_loop(P, extra_ffn)
stamp(4)
for f in pend: f()
def cs_publish():
    e(f"v_add_f32 v{vCS0}, v{vCS0}, v{vCS1}")
    e(f"v_mov_b32 v{vCS1}, v{vCS0}")
    e(f"v_permlane32_swap_b32 v{vCS0}, v{vCS1}")
    e(f"v_add_f32 v{vCS0}, v{vCS0}, v{vCS1}")
    e(f"s_lshl_b32 s{sT0}, s{sW}, 8")
    e(f"s_add_u32 s{sT0}, s{sT0}, {MISC}")
    e(f"v_add_u32 v{vT}, s{sT0}, v{vL4}")
    t = e(f"ds_write_b32 v{vT}, v{vCS0}")
    g.wait(t); e("s_barrier")
cs_publish()
CS = 160
e(f"v_lshrrev_b32 v{vT}, 5, v{vL}")
e(f"v_lshlrev_b32 v{vT}, 4, v{vT}")
e(f"v_add_u32 v{vT}, s{sT0}, v{vT}")
e(f"v_xor_b32 v{vT+1}, 256, v{vT}")
tcs = {}
for ui in range(2):
    for q in range(4):
        tcs[ui] = e(f"ds_read_b128 {vr(CS+ui*16+q*4,4)}, v{vT+ui} offset:{q*32}")
vK0, vK1, vS2 = 48, 50, 52
g.wait(tk["st"])
for si in range(2):
    e(f"v_rcp_f32 v{vT+2}, v{vS+si}")
    e(f"v_mul_f32 v{vS2+si}, v{vS+si}, v{vS+si}")
    e(f"v_mul_f32 v{vK0+si}, 0xc0135761, v{vT+2}")
    e(f"v_mul_f32 v{vT+3}, v{vT+2}, v{vT+2}")
    e(f"v_mul_f32 v{vT+3}, 0x3d372713, v{vT+3}")
    e(f"v_mul_f32 v{vK1+si}, v{vK0+si}, v{vT+3}")
e(f"s_and_b32 s{sT0}, s{sW}, 1")
e(f"s_lshl_b32 s{sT0}, s{sT0}, 1")
e(f"s_lshl_b32 s{sT1}, s{sRB}, 2")
e(f"s_add_u32 s{sT0}, s{sT0}, s{sT1}")
e(f"s_mul_i32 s{sT0}, s{sT0}, 112")
e(f"s_lshl_b32 s{sT1}, s{sCB}, 3")
e(f"s_add_u32 s{sT0}, s{sT0}, s{sT1}")
e(f"s_add_u32 s{sT2}, s{sT0}, s{sW}")
e(f"s_xor_b32 s{sT1}, s{sW}, 1")
e(f"s_add_u32 s{sT3}, s{sT0}, s{sT1}")
e(f"s_lshl_b32 s{sT2}, s{sT2}, 10")
e(f"s_lshl_b32 s{sT3}, s{sT3}, 10")
TM = 192
for ui in range(2):
    g.wait(tcs[ui])
    for si in range(2):
        A = acc(ui, si); C = CS + ui * 16
        G_, U_, Q_ = TM, TM + 8, TM + 16
        PK = TM + 24 + ((ui * 2 + si) & 1) * 4
        for j in range(8): e(f"v_fma_f32 v{G_+j}, -v{vM+si}, v{C+j}, v{A+j}")
        for j in range(8): e(f"v_mul_f32 v{Q_+j}, v{G_+j}, v{G_+j}")
        for j in range(8): e(f"v_fma_f32 v{Q_+j}, v{Q_+j}, v{vK1+si}, v{vK0+si}")
        for j in range(8): e(f"v_mul_f32 v{Q_+j}, v{Q_+j}, v{G_+j}")
        for j in range(8):
            e(f"v_exp_f32 v{Q_+j}, v{Q_+j}")
            e(f"v_fma_f32 v{U_+j}, -v{vM+si}, v{C+8+j}, v{A+8+j}")
        for j in range(8): e(f"v_fma_f32 v{Q_+j}, v{Q_+j}, v{vS2+si}, v{vS2+si}")
        for j in range(8):
            e(f"v_rcp_f32 v{Q_+j}, v{Q_+j}")
            e(f"v_mul_f32 v{U_+j}, v{U_+j}, v{G_+j}")
        for j in range(8): e(f"v_mul_f32 v{U_+j}, v{U_+j}, v{Q_+j}")
        for j in range(4): e(f"v_cvt_pk_bf16_f32 v{PK+j}, v{U_+2*j}, v{U_+2*j+1}")
        so = sT2 if ui == 0 else sT3
        if si == 1: e(f"s_add_u32 s{so}, s{so}, {112*1024}")
        e(f"buffer_store_dwordx4 {vr(PK,4)}, v{vL16}, {S4(SWS)}, s{so} offen sc1")
stamp(5)
g.wait_all(); e("s_barrier")
flag_store(3)
stamp(6)
WDR, ACC2, HF = 64, 48, 32
def wdr(k): return WDR + 4 * (k % 48)
vA1, vA2, vA3, vH0, vH1 = 5, 6, 7, 8, 9
t1 = vT
e(f"v_lshrrev_b32 v{t1}, 5, v{vL}")
e(f"v_lshlrev_b32 v{vTR}, 10, v{t1}")
e(f"v_bfe_u32 v{t1}, v{vL}, 3, 1")
e(f"v_lshl_or_b32 v{vTR}, v{t1}, 8, v{vTR}")
e(f"v_lshl_or_b32 v{vTR}, v{t1}, 6, v{vTR}")
e(f"v_bfe_u32 v{t1}, v{vL}, 2, 1")
e(f"v_lshl_or_b32 v{vTR}, v{t1}, 7, v{vTR}")
e(f"v_bfe_u32 v{t1}, v{vL}, 4, 1")
e(f"v_lshl_or_b32 v{vTR}, v{t1}, 5, v{vTR}")
e(f"v_and_b32 v{t1}, 1, v{vL}")
e(f"v_lshl_or_b32 v{vTR}, v{t1}, 4, v{vTR}")
e(f"v_bfe_u32 v{t1}, v{vL}, 1, 1")
e(f"v_lshl_or_b32 v{vTR}, v{t1}, 3, v{vTR}")
e(f"s_and_b32 s{sT0}, s{sW}, 1")
e(f"s_lshl_b32 s{sT0}, s{sT0}, 6")
e(f"v_xor_b32 v{vTR}, s{sT0}, v{vTR}")
e(f"s_lshr_b32 s{sT1}, s{sW}, 2")
e(f"s_mul_i32 s{sT0}, s{sT1}, {GAM}")
e(f"v_add_u32 v{vA1}, s{sT0}, v{vTR}")
e(f"s_lshl_b32 s{sT0}, s{sT1}, 13")
e(f"s_add_u32 s{sT0}, s{sT0}, {XB}")
e(f"v_add_u32 v{vA2}, s{sT0}, v{vTR}")
def tr(dst, a, off):
    e(f"ds_read_b64_tr_b16 {vr(dst,2)}, v{a} offset:{off}")
    return e(f"ds_read_b64_tr_b16 {vr(dst+2,2)}, v{a} offset:{off+512}")
for i in range(3):
    st = ((7 + i) % 3) * STG
    for k in range(8): tr(wdr(12 * i + k), vA1, st + k * 2048)
    for k in range(4): tr(wdr(12 * i + 8 + k), vA2, st + k * 2048)
e(f"s_lshr_b32 s{sT0}, s{sR2}, 1")
e(f"v_lshrrev_b32 v{vT}, 2, v{vL}")
e(f"v_and_b32 v{vT+1}, 3, v{vL}")
e(f"v_mov_b32 v{vMASK}, 0x02020202")
e(f"v_mov_b32 v{vT+2}, 0x00000202")
e(f"v_cmp_eq_u32 vcc, 3, v{vT+1}")
e(f"v_cndmask_b32 v{vMASK}, v{vMASK}, v{vT+2}, vcc")
e(f"v_cmp_eq_u32 vcc, s{sT0}, v{vT}")
e(f"v_cndmask_b32 v{vMASK}, 0, v{vMASK}, vcc")
g.wait_all(vm=False); e("s_barrier")
MID, LATE = 65536, 131072
for b in range(2): wd_dma(MID, sD0, 36, b)
for b in range(2): wd_dma(MID + 16384, sD0, 56 + 36, b)
for b in range(2): wd_dma(MID + 32768, sD1, 36, b)
for b in range(2): wd_dma(LATE, sD0, 48, b)
for b in range(2): t_wd = wd_dma(LATE + 16384, sD0, 56 + 48, b)
tp = poll_issue()
e(f"s_lshr_b32 s{sT1}, s{sW}, 2")
e(f"s_lshl_b32 s{sT0}, s{sT1}, 14")
e(f"s_add_u32 s{sT0}, s{sT0}, {MID}")
e(f"v_add_u32 v{vA1}, s{sT0}, v{vTR}")
e(f"s_add_u32 s{sT0}, s{sT0}, {LATE-MID}")
e(f"v_add_u32 v{vA3}, s{sT0}, v{vTR}")
e(f"s_lshl_b32 s{sT0}, s{sT1}, 13")
e(f"s_add_u32 s{sT0}, s{sT0}, {MID+32768}")
e(f"v_add_u32 v{vA2}, s{sT0}, v{vTR}")
e(f"s_bfe_u32 s{sT0}, s{sW}, 0x10001")
e(f"s_lshl_b32 s{sHO}, s{sR2}, 1")
e(f"s_add_u32 s{sHO}, s{sHO}, s{sT0}")
e(f"s_mov_b32 s{sK0}, s{sHO}")
e(f"s_mul_i32 s{sHO}, s{sHO}, 112")
e(f"s_mul_i32 s{sT0}, s{sT1}, 56")
e(f"s_add_u32 s{sHO}, s{sHO}, s{sT0}")
e(f"s_and_b32 s{sT0}, s{sW}, 1")
e(f"s_lshl_b32 s{sT0}, s{sT0}, 2")
e(f"s_add_u32 s{sHO}, s{sHO}, s{sT0}")
e(f"s_lshl_b32 s{sHO}, s{sHO}, 10")
e(f"s_lshl_b32 s{sMW}, s{sW}, 12")
e(f"s_lshr_b32 s{sT0}, s{sW}, 1")
e(f"s_lshl_b32 s{sT0}, s{sT0}, 13")
e(f"v_add_u32 v{vH0}, s{sT0}, v{vL16}")
e(f"v_add_u32 v{vH1}, 0x10000, v{vH0}")
htok = {}
def h_issue(c):
    e(f"s_add_u32 m0, s{sMW}, {(c % 4) * 32768}")
    for n in range(4):
        htok[c] = e(f"buffer_load_dwordx4 v{vL16}, {S4(SWS)}, s{sHO} offen" + (f" offset:{n*1024}" if n else "") + " sc1 lds")
    e(f"s_add_u32 s{sHO}, s{sHO}, 8192")
poll_check(tp)
stamp(7)
h_issue(0); h_issue(1)
g.wait(t_wd); e("s_barrier")
for k in range(8): tr(wdr(36 + k), vA1, k * 2048)
for k in range(4): tr(wdr(44 + k), vA2, k * 2048)
g.wait(htok[0], g.lastlg()); e("s_barrier")
h_issue(2); h_issue(3)
stamp(8)
def hread(k):
    c, n = divmod(k, 8); st = c % 4
    return e(f"ds_read_b128 {vr(HF+4*(k%4),4)}, v{vH0 + (st >> 1)} offset:{(st & 1)*32768 + n*1024}")
vXO, vYO, XV, YV = 10, 11, 64 + 32, 64 + 40
def fin_setup():
    srd(SO, pOUT, 1835008)
    i_, hf = vT, vT + 1
    e(f"v_and_b32 v{i_}, 31, v{vL}")
    e(f"v_lshrrev_b32 v{hf}, 5, v{vL}")
    e(f"v_mul_u32_u24 v{vXO}, 57344, v{i_}")
    e(f"v_lshl_add_u32 v{vXO}, v{hf}, 4, v{vXO}")
    e(f"s_lshl_b32 s{sT0}, s{sC2}, 6")
    e(f"s_and_b32 s{sT1}, s{sW}, 1")
    e(f"s_lshl_b32 s{sT1}, s{sT1}, 5")
    e(f"s_add_u32 s{sT0}, s{sT0}, s{sT1}")
    e(f"s_lshr_b32 s{sT1}, s{sW}, 2")
    e(f"s_lshl_b32 s{sT1}, s{sT1}, 4")
    e(f"s_add_u32 s{sT2}, s{sT0}, s{sT1}")
    e(f"s_mul_i32 s{sK1}, s{sK0}, 896")
    e(f"s_lshl_b32 s{sT1}, s{sT2}, 1")
    e(f"s_add_u32 s{sK1}, s{sK1}, s{sT1}")
    e(f"v_lshlrev_b32 v{vT+2}, 6, v{i_}")
    e(f"v_add_u32 v{vT+2}, s{sK0}, v{vT+2}")
    e(f"v_sub_u32 v{vT+3}, 0x800, v{vT+2}")
    e(f"v_and_b32 v{vT+3}, 0x7ff, v{vT+3}")
    e(f"v_lshl_add_u32 v{vT+4}, v{hf}, 3, s{sT2}")
    e(f"v_sub_u32 v{vT+5}, {448-7}, v{vT+4}")
    e(f"s_cmp_ge_u32 s{sT0}, 224")
    e(f"s_cselect_b64 vcc, -1, 0")
    e(f"s_cselect_b32 s{sT3}, 1, 0")
    e(f"v_cndmask_b32 v{vT+2}, v{vT+2}, v{vT+3}, vcc")
    e(f"v_cndmask_b32 v{vT+4}, v{vT+4}, v{vT+5}, vcc")
    e(f"v_lshlrev_b32 v{vYO}, 12, v{vT+4}")
    e(f"v_bfe_u32 v{vT+3}, v{vT+2}, 5, 1"); e(f"v_lshl_or_b32 v{vYO}, v{vT+3}, 11, v{vYO}")
    e(f"v_bfe_u32 v{vT+3}, v{vT+2}, 9, 2"); e(f"v_lshl_or_b32 v{vYO}, v{vT+3}, 9, v{vYO}")
    e(f"v_and_b32 v{vT+3}, 31, v{vT+2}"); e(f"v_lshl_or_b32 v{vYO}, v{vT+3}, 4, v{vYO}")
    e(f"v_bfe_u32 v{vT+3}, v{vT+2}, 6, 3"); e(f"v_lshl_or_b32 v{vYO}, v{vT+3}, 1, v{vYO}")
    e(f"s_mul_i32 s{sD0}, s{sT3}, {7*4096}")
    e(f"s_add_u32 s{sD0}, s{sD0}, {Y_OFF}")
    e(f"s_mul_i32 s{sD1}, s{sT3}, {-8192}")
    e(f"s_add_u32 s{sD1}, s{sD1}, 4096")
    e(f"v_and_b32 v{vT}, 3, v{vL}")
    e(f"v_mov_b32 v{vMASK}, 0x04040000")
    e(f"v_cmp_eq_u32 vcc, 3, v{vT}")
    e(f"v_cndmask_b32 v{vMASK}, 0, v{vMASK}, vcc")
rt = {}
for k in range(3): rt[k] = hread(k)
late = [lambda k=k: tr(wdr(48 + k), vA3, k * 2048) for k in range(8)]
for k in range(56):
    c, n = divmod(k, 8)
    if n == 5 and c < 6:
        g.wait(htok[c + 1], g.lastlg()); e("s_barrier")
    g.wait(rt[k])
    cc = "0" if k == 0 else vr(ACC2, 16)
    e(f"v_mfma_f32_32x32x16_bf16 {vr(ACC2,16)}, {vr(wdr(k),4)}, {vr(HF+4*(k%4),4)}, {cc}")
    if k + 3 < 56: rt[k + 3] = hread(k + 3)
    if n == 5 and c + 4 < 7: h_issue(c + 4)
    if k >= 8 and late: late.pop(0)()
    if k == 2: fin_setup()
    if k == 22:
        tx = e(f"buffer_load_dwordx4 {vr(XV,4)}, v{vXO}, {S4(SX)}, s{sK1} offen")
        tp = poll_issue()
    if k == 38:
        poll_check(tp)
        for j in range(8):
            ty = e(f"buffer_load_ushort v{YV+j}, v{vYO}, {S4(SWS)}, s{sD0} offen sc1")
            if j < 7: e(f"s_add_u32 s{sD0}, s{sD0}, s{sD1}")
stamp(9)
RED = 32768
e(f"s_lshl_b32 s{sT0}, s{sW}, 11")
e(f"s_add_u32 s{sT0}, s{sT0}, {RED}")
e(f"v_add_u32 v{vT}, s{sT0}, v{vL16}")
e(f"v_xor_b32 v{vT+1}, 8192, v{vT}")
e(f"s_cmp_ge_u32 s{sW}, 4")
e("s_cbranch_scc1 L_hi")
snap = g.snapshot()
e(f"ds_write_b128 v{vT}, {vr(ACC2+8,4)}")
e(f"ds_write_b128 v{vT}, {vr(ACC2+12,4)} offset:1024")
e("s_branch L_join")
g.label("L_hi")
g.restore(snap)
e(f"ds_write_b128 v{vT}, {vr(ACC2,4)}")
e(f"ds_write_b128 v{vT}, {vr(ACC2+4,4)} offset:1024")
for j in range(8): e(f"v_mov_b32 v{ACC2+j}, v{ACC2+8+j}")
g.label("L_join")
g.wait_all(vm=False); e("s_barrier")
e(f"ds_read_b128 {vr(HF,4)}, v{vT+1}")
e(f"ds_read_b128 {vr(HF+4,4)}, v{vT+1} offset:1024")
g.wait_all()
Q_ = HF + 8; XU = 64
for j in range(8): e(f"v_add_f32 v{ACC2+j}, v{ACC2+j}, v{HF+j}")
for j in range(8):
    e(f"v_mul_f32 v{Q_+j}, 0xbfb8aa3b, v{ACC2+j}")
    e(f"v_lshlrev_b32 v{YV+j}, 16, v{YV+j}")
for j in range(8):
    e(f"v_exp_f32 v{Q_+j}, v{Q_+j}")
    e(f"v_mul_f32 v{YV+j}, v{YV+j}, v{ACC2+j}")
for j in range(8):
    e(f"v_add_f32 v{Q_+j}, 1.0, v{Q_+j}")
    if j & 1: e(f"v_and_b32 v{XU+j}, 0xffff0000, v{XV+j//2}")
    else: e(f"v_lshlrev_b32 v{XU+j}, 16, v{XV+j//2}")
for j in range(8): e(f"v_rcp_f32 v{Q_+j}, v{Q_+j}")
for j in range(8): e(f"v_fma_f32 v{XU+j}, v{YV+j}, v{Q_+j}, v{XU+j}")
for j in range(4): e(f"v_cvt_pk_bf16_f32 v{HF+j}, v{XU+2*j}, v{XU+2*j+1}")
e(f"buffer_store_dwordx4 {vr(HF,4)}, v{vXO}, {S4(SO)}, s{sK1} offen")
def stamps_out():
    if not STAMPS: return
    g.wait_all(); stamp(10)
    e(f"s_cmp_lg_u32 s{sW}, 0"); e("s_cbranch_scc1 L_end")
    e(f"s_lshl_b32 s{sT0}, s2, 6"); e(f"s_add_u32 s{sT0}, s{sT0}, {TS_OFF}")
    e(f"v_mov_b32 v{vT+1}, 0")
    for i in range(12):
        e(f"v_mov_b32 v{vT}, s{sST+i}")
        e(f"buffer_store_dword v{vT}, v{vT+1}, {S4(SWS)}, s{sT0} offen offset:{4*i}")
stamps_out()
e("s_endpgm")

g.raw(".p2align 3")
g.label("L_dft")
g.restore(snap_role)
P = phase1(dft=True)
at = P["at"]
vC0, vC1, vC2 = 41, 42, 43
def const_setup():
    srd(SW1, pCS, 8388608); srd(SWD, pSS, 8388608)
    e(f"v_lshrrev_b32 v{vT}, 3, v{vL}")
    e(f"s_and_b32 s{sT0}, s{sW}, 1")
    e(f"s_lshl_b32 s{sT0}, s{sT0}, 6")
    e(f"v_xor_b32 v{vT+1}, s{sT0}, v{vSW}")
    e(f"v_lshl_add_u32 v{vC0}, v{vT}, 18, v{vT+1}")
    e(f"v_lshl_add_u32 v{vC1}, v{vT}, 12, v{vT+1}")
at(9, 0, const_setup)
def extra_dft(c):
    if c != 7: return []
    def a(mat):
        e(f"s_and_b32 s{sT0}, s{sW}, 3"); e(f"s_lshl_b32 s{sT0}, s{sT0}, 21")
        e(f"s_lshr_b32 s{sT1}, s{sW}, 2"); e(f"s_lshl_b32 s{sT1}, s{sT1}, 17")
        e(f"s_add_u32 s{sT0}, s{sT0}, s{sT1}")
        e(f"s_lshl_b32 s{sT1}, s{sW}, 10")
        dma(sT1, STG + mat * 8192, vC0, SW1 if mat == 0 else SWD, f"s{sT0}")
    def b():
        e(f"s_cmp_ge_u32 s{sW}, 4")
        e(f"s_cselect_b32 s{SO}, s{pSS}, s{pCS}")
        e(f"s_cselect_b32 s{SO+1}, s{pSS+1}, s{pCS+1}")
        e(f"s_and_b32 s{SO+1}, s{SO+1}, 0xffff")
        e(f"s_mov_b32 s{SO+2}, 8388608"); e(f"s_mov_b32 s{SO+3}, 0x20000")
        e(f"s_and_b32 s{sT0}, s{sW}, 3"); e(f"s_lshl_b32 s{sT0}, s{sT0}, 15")
        e(f"s_lshl_b32 s{sT1}, s{sW}, 10")
        dma(sT1, GAM + STG, vC1, SO, f"s{sT0}")
    return [lambda: a(0), lambda: a(1), b]
at(8, 0, lambda: flag_store(1))
at(14, 0, lambda: tk.__setitem__("poll", poll_issue()))
RR, QQ = 160, 192
def stat_fetch_dft():
    poll_check(tk["poll"])
    e(f"v_lshrrev_b32 v{vT}, 5, v{vL}")
    e(f"v_lshlrev_b32 v{vT}, 5, v{vT}")
    e(f"s_and_b32 s{sT0}, s{sW}, 1")
    e(f"s_lshl_b32 s{sT0}, s{sT0}, 8")
    e(f"s_lshl_b32 s{sT1}, s{sRB}, 9")
    e(f"s_add_u32 s{sT0}, s{sT0}, s{sT1}")
    e(f"s_add_u32 s{sT0}, s{sT0}, {XR}")
    e(f"s_add_u32 s{sT1}, s{sT0}, {XQ-XR}")
    for si in range(2):
        for q in range(4):
            off = si * 128 + (q >> 1) * 64 + (q & 1) * 16
            e(f"buffer_load_dwordx4 {vr(RR+si*16+q*4,4)}, v{vT}, {S4(SWS)}, s{sT0} offen offset:{off} sc1")
            tk["st"] = e(f"buffer_load_dwordx4 {vr(QQ+si*16+q*4,4)}, v{vT}, {S4(SWS)}, s{sT1} offen offset:{off} sc1")
at(20, 0, stat_fetch_dft)
pend = run_loop(P, extra_dft)
stamp(4)
for f in pend: f()
cs_publish()
e(f"v_xor_b32 v{vT+1}, 256, v{vT}")
t = e(f"ds_read_b32 v{vCS1}, v{vT+1}")
e(f"s_sub_u32 s{sT0}, s{sCB}, 14")
e(f"s_lshl_b32 s{sT0}, s{sT0}, 20")
e(f"s_add_u32 s{sT0}, s{sT0}, {Z_OFF}")
e(f"s_lshl_b32 s{sT1}, s{sRB}, 13")
e(f"s_add_u32 s{sT0}, s{sT0}, s{sT1}")
e(f"s_and_b32 s{sT1}, s{sW}, 1")
e(f"s_lshl_b32 s{sT1}, s{sT1}, 12")
e(f"s_add_u32 s{sT0}, s{sT0}, s{sT1}")
e(f"s_lshl_b32 s{sT1}, s{sW}, 17")
e(f"s_add_u32 s{sT2}, s{sT0}, s{sT1}")
e(f"s_xor_b32 s{sT1}, s{sT1}, 0x20000")
e(f"s_add_u32 s{sT3}, s{sT0}, s{sT1}")
g.wait(t, tk["st"])
TM = 224
for ui in range(2):
    for si in range(2):
        A = acc(ui, si)
        for j in range(16): e(f"v_mul_f32 v{TM+j}, v{vCS0+ui}, v{QQ+si*16+j}")
        for j in range(16): e(f"v_fma_f32 v{TM+j}, v{A+j}, v{RR+si*16+j}, -v{TM+j}")
        PK = 240 + ((ui * 2 + si) & 1) * 8
        for j in range(8): e(f"v_cvt_pk_bf16_f32 v{PK+j}, v{TM+2*j}, v{TM+2*j+1}")
        for q in range(2):
            e(f"buffer_store_dwordx4 {vr(PK+4*q,4)}, v{vL16}, {S4(SWS)}, s{sT2 if ui == 0 else sT3} offen offset:{si*2048+q*1024} sc1")
stamp(5)
g.wait_all(); e("s_barrier")
e(f"s_lshl_b32 s{sK0}, s{sRB}, 1")
e(f"s_add_u32 s{sK0}, s{sK0}, s{sCB}")
e(f"s_sub_u32 s{sK0}, s{sK0}, 14")
e(f"s_cmp_gt_u32 s{sK0}, 28")
e("s_cbranch_scc1 L_fft_done")
snap_fft = g.snapshot()
flag_store(3)
stamp(6)
C32, S32, N32 = 16, 24, 32
F64 = 40
TW = 88
ZF = 152
D1 = 184
vN, vP = 1, 5
vMASK_, vPOLL_ = 9, 10
FT = 248
vT_save = vT
vT = FT
a = x_read_addrs(perm=False)
e(f"v_add_u32 v{vN}, {STG}, v{a}")
for k in range(1, 4): e(f"v_xor_b32 v{vN+k}, {k << 5}, v{vN}")
a = x_read_addrs(perm=True)
e(f"v_mov_b32 v{11}, v{vT+1}")
e(f"v_add_u32 v{vP}, {STG}, v{a}")
for k in range(1, 4): e(f"v_xor_b32 v{vP+k}, {k << 5}, v{vP}")
vMASK, vPOLL = vMASK_, vPOLL_
e(f"v_and_b32 v{vT}, 3, v{vL}")
e(f"v_mov_b32 v{vMASK}, 0x02020000")
e(f"v_cmp_eq_u32 vcc, 3, v{vT}")
e(f"v_cndmask_b32 v{vMASK}, 0, v{vMASK}, vcc")
tp = poll_issue()
for q in range(2):
    e(f"ds_read_b128 {vr(C32+4*q,4)}, v{vN+q} offset:0")
    e(f"ds_read_b128 {vr(S32+4*q,4)}, v{vN+q} offset:8192")
def f64(mat, p, kap):
    if p == 1 and kap >= 2: return (C32 if mat == 0 else S32) + 4 * (kap - 2)
    return F64 + (mat * 6 + p * 4 + kap) * 4
def f64_read(mat, p, kap):
    return e(f"ds_read_b128 {vr(f64(mat,p,kap),4)}, v{vP+kap} offset:{mat*8192 + p*4096}")
for mat in range(2):
    for p in range(2):
        for kap in range(4):
            if not (p == 1 and kap >= 2): f64_read(mat, p, kap)
for mat in range(2):
    for kap in range(4):
        e(f"ds_read_b128 {vr(D1+mat*16+kap*4,4)}, v{vN+kap} offset:{GAM + mat*4096}")
g.wait_all(vm=False)
for j in range(8): e(f"v_xor_b32 v{N32+j}, 0x80008000, v{S32+j}")
for mat in range(2):
    for j in range(16):
        e(f"v_lshlrev_b32 v{TW+mat*32+2*j}, 16, v{D1+mat*16+j}")
        e(f"v_and_b32 v{TW+mat*32+2*j+1}, 0xffff0000, v{D1+mat*16+j}")
ZL = 98304
vZ0, vZ1 = 12, 11
e(f"v_bfe_u32 v{vT}, v{vL}, 5, 1")
e(f"v_bfe_u32 v{vT+1}, v{vL}, 3, 2")
e(f"v_lshl_add_u32 v{vT}, v{vT}, 3, v{vT+1}")
e(f"v_lshl_add_u32 v{vZ0}, v{vT}, 11, v{vSW}")
e(f"v_xor_b32 v{vZ1}, 64, v{vZ0}")
e(f"v_add_u32 v{vZ1}, {4*2048}, v{vZ1}")
e(f"s_lshr_b32 s{sT0}, s{sW}, 2"); e(f"s_lshl_b32 s{sT0}, s{sT0}, 20")
e(f"s_bfe_u32 s{sT1}, s{sW}, 0x10001"); e(f"s_lshl_b32 s{sT1}, s{sT1}, 16")
e(f"s_add_u32 s{sT0}, s{sT0}, s{sT1}")
e(f"s_and_b32 s{sT1}, s{sW}, 1"); e(f"s_lshl_b32 s{sT1}, s{sT1}, 10")
e(f"s_add_u32 s{sT0}, s{sT0}, s{sT1}")
e(f"s_lshr_b32 s{sT1}, s{sK0}, 2"); e(f"s_lshl_b32 s{sT1}, s{sT1}, 17")
e(f"s_add_u32 s{sT0}, s{sT0}, s{sT1}")
e(f"s_and_b32 s{sT1}, s{sK0}, 3"); e(f"s_lshl_b32 s{sT1}, s{sT1}, 7")
e(f"s_add_u32 s{sT0}, s{sT0}, s{sT1}")
e(f"s_add_u32 s{sT2}, s{sT0}, {Z_OFF}")
e(f"s_add_u32 s{sT3}, s{sT2}, {16*2048}")
e(f"s_lshl_b32 s{sMW}, s{sW}, 13")
vZR = 13
e(f"v_and_b32 v{vT}, 31, v{vL}")
e(f"v_bfe_u32 v{vT+1}, v{vT}, 1, 3")
e(f"v_xor_b32 v{vT+1}, s{sW}, v{vT+1}")
e(f"v_lshlrev_b32 v{vT+1}, 4, v{vT+1}")
e(f"v_lshl_or_b32 v{vT+1}, v{vT}, 7, v{vT+1}")
e(f"v_lshrrev_b32 v{vT}, 5, v{vL}")
e(f"v_lshl_or_b32 v{vT+1}, v{vT}, 12, v{vT+1}")
e(f"v_add_u32 v{vZR}, {ZL}, v{vT+1}")
poll_check(tp)
stamp(7)
for hf in range(2):
    for b in range(4):
        dma(sMW, ZL + hf * 4096 + b * 1024, vZ0 if (b & 1) == 0 else vZ1, SWS, f"s{sT2 if b < 2 else sT3}", ioff=hf * 512, sc1=True)
g.wait_all(); e("s_barrier")
stamp(8)
def zf(part, tau, q): return ZF + ((part * 2 + tau) * 2 + q) * 4
tz = {}
for tau in range(2):
    for part in range(2):
        for q in range(2):
            tz[tau] = e(f"ds_read_b128 {vr(zf(part,tau,q),4)}, v{vZR} offset:{((part*2+tau)*2+q)*8192}")
def d1(ri, tau): return D1 + (ri * 2 + tau) * 16
def mf(D, A, B, first): e(f"v_mfma_f32_32x32x16_bf16 {vr(D,16)}, {vr(A,4)}, {vr(B,4)}, " + ("0" if first else vr(D, 16)))
for tau in range(2):
    g.wait(tz[tau])
    for q in range(2):
        mf(d1(0, tau), zf(0, tau, q), C32 + 4 * q, q == 0)
        mf(d1(1, tau), zf(0, tau, q), S32 + 4 * q, q == 0)
    for q in range(2):
        mf(d1(0, tau), zf(1, tau, q), N32 + 4 * q, False)
        mf(d1(1, tau), zf(1, tau, q), C32 + 4 * q, False)
e("s_nop 7")
for mat in range(2):
    for kap in (2, 3): tl = f64_read(mat, 1, kap)
for tau in range(2):
    for j2 in range(8):
        for h in range(2):
            j = 2 * j2 + h
            Dr, Di, Tr, Ti = d1(0, tau) + j, d1(1, tau) + j, TW + tau * 16 + j, TW + 32 + tau * 16 + j
            e(f"v_mul_f32 v{FT+h}, v{Di}, v{Ti}")
            e(f"v_mul_f32 v{FT+2+h}, v{Di}, v{Tr}")
            e(f"v_fma_f32 v{FT+h}, v{Dr}, v{Tr}, -v{FT+h}")
            e(f"v_fma_f32 v{FT+2+h}, -v{Dr}, v{Ti}, -v{FT+2+h}")
        e(f"v_cvt_pk_bf16_f32 v{ZF+tau*8+j2}, v{FT}, v{FT+1}")
        e(f"v_cvt_pk_bf16_f32 v{ZF+16+tau*8+j2}, v{FT+2}, v{FT+3}")
g.wait(tl)
for kap in range(4):
    for p in range(2):
        mf(D1 + p * 16, f64(0, p, kap), ZF + 4 * kap, kap == 0)
    for p in range(2):
        mf(D1 + p * 16, f64(1, p, kap), ZF + 16 + 4 * kap, False)
e(f"s_lshl_b32 s{sT0}, s{sK0}, 3")
e(f"s_add_u32 s{sT0}, s{sT0}, s{sW}")
e(f"s_lshl_b32 s{sT0}, s{sT0}, 12")
e(f"s_add_u32 s{sT2}, s{sT0}, {Y_OFF}")
for p in range(2):
    for j in range(8): e(f"v_cvt_pk_bf16_f32 v{TW+p*8+j}, v{D1+p*16+2*j}, v{D1+p*16+2*j+1}")
    for q in range(2):
        e(f"buffer_store_dwordx4 {vr(TW+p*8+4*q,4)}, v{vL16}, {S4(SWS)}, s{sT2} offen offset:{(p*2+q)*1024} sc1")
stamp(9)
g.wait_all(); e("s_barrier")
g.label("L_fft_done")
vT = vT_save
flag_store(7)
stamps_out()
g.label("L_end")
e("s_endpgm")
g.raw(f""".section .rodata,"a"
.p2align 6
.amdhsa_kernel {KN}
  .amdhsa_next_free_vgpr 256
  .amdhsa_next_free_sgpr 102
  .amdhsa_accum_offset 256
  .amdhsa_group_segment_fixed_size 0
  .amdhsa_kernarg_size 96
  .amdhsa_user_sgpr_count 2
  .amdhsa_user_sgpr_kernarg_segment_ptr 1
  .amdhsa_system_sgpr_workgroup_id_x 1
.end_amdhsa_kernel""")
open(OUT, "w").write("\n".join(g.out) + "\n")
print("lines", len(g.out), "nops", g.nops)
```

```python
import sys
from asmgen import *

STAMPS = "--stamps" in sys.argv
OPT = set(a[2:] for a in sys.argv if a.startswith("--"))
OUT = [a for a in sys.argv[1:] if not a.startswith("--")]
OUT = OUT[0] if OUT else "k.s"
KN = "recurrent_scan__spectral_fnet__geglu_ffn__prompt_kernel"

H_OFF, Z_OFF, Y_OFF, ST_OFF = 0, 0x700000, 0x900000, 0xA00000
XST = ST_OFF
TS_OFF = ST_OFF + 0x8000
FL_OFF = ST_OFF + 0x10000
WS_SIZE = ST_OFF + 0x18000
ROT = [int(a[3:]) for a in OPT if a.startswith("rot")]; ROT = ROT[0] if ROT else 1
GAM, STG, XB, MISC = 49152, 16384, 98304, 147456
BIG = 0x7F000000

g = Gen(); e = g.e
sW, sRB, sCB, sT0, sT1, sXO, sWK, sF1, sMW, sMX, sT2, sT3, sT4 = 3, 4, 5, 6, 7, 8, 9, 10, 11, 12, 13, 14, 15
pX, pCS, pSS, pCD, pSD, pWG, pWU, pWD, pOUT, pDBG, pWS = 16, 18, 20, 22, 24, 28, 30, 32, 34, 36, 38
SX, SW0, SW1, SWD, SWS, SO, SD = 40, 44, 48, 52, 56, 60, 64
sPC = 68
sNON, sCH = 78, 79
sR2, sC2, sFLAG, sK0, sK1, sSPIN, sHO = 70, 71, 72, 73, 74, 75, 76
sST = 80
nstamp = [0]
def stamp(i):
    if not STAMPS: return
    e("s_memrealtime s[100:101]"); g.wait_all(vm=False); e(f"s_mov_b32 s{sST+i}, s100")
def srd(b, p, size):
    e(f"s_mov_b32 s{b}, s{p}"); e(f"s_and_b32 s{b+1}, s{p+1}, 0xffff")
    e(f"s_mov_b32 s{b+2}, {size}"); e(f"s_mov_b32 s{b+3}, 0x20000")
def S4(b): return sr(b, 4)

vL = 0
vXD0, vXD1 = 1, 2
vWD0, vWD1 = 3, 4
vXR = 5
vWR = 9
vSW = 13
vL16 = 14
vL4 = 15
vEXP = 16
vPOLL = 17
vPA = 31
vCS0, vCS1 = 18, 19
vT = 20
vTR = 30
ACC, XF, WF = 64, 128, 144
def acc(ui, si): return ACC + (ui * 2 + si) * 16
def xf(s, si): return XF + s * 8 + si * 4
def wf(s, ui): return WF + s * 8 + ui * 4

spin_id = [0]
def spin(tok, loads, test, sleep=1):
    n = spin_id[0]; spin_id[0] += 1
    g.wait(tok)
    test()
    e(f"s_cbranch_vccz L_ok{n}")
    snap = g.snapshot()
    e(f"s_mov_b32 s{sSPIN}, 0x10000")
    g.label(f"L_spin{n}")
    e(f"s_sleep {sleep}")
    loads()
    e("s_waitcnt vmcnt(0)")
    test()
    e(f"s_cbranch_vccz L_ok{n}")
    e(f"s_sub_u32 s{sSPIN}, s{sSPIN}, 1")
    e(f"s_cmp_lg_u32 s{sSPIN}, 0")
    e(f"s_cbranch_scc1 L_spin{n}")
    g.label(f"L_ok{n}")
    g.restore(snap)
def poll_issue():
    return e(f"buffer_load_dword v{vPOLL}, v{vPA}, {S4(SWS)}, 0 offen sc1")
def poll_check(tok):
    spin(tok, poll_issue, lambda: e(f"v_cmp_ne_u32 vcc, v{vPOLL}, v{vEXP}"))
def poll_setup(vaddr, nlanes):
    e(f"s_cmp_eq_u32 s{sW}, 0")
    e(f"s_cselect_b32 s{sT0}, {nlanes}, 0")
    e(f"v_mov_b32 v{vPA}, {BIG}")
    e(f"v_mov_b32 v{vEXP}, s{sNON}")
    e(f"v_cmp_gt_u32 vcc, s{sT0}, v{vL}")
    e(f"v_cndmask_b32 v{vPA}, v{vPA}, v{vaddr}, vcc")
    e(f"v_cndmask_b32 v{vEXP}, 0, v{vEXP}, vcc")
def flag_store(word):
    e(f"s_cmp_lg_u32 s{sW}, 0")
    e(f"s_cselect_b32 s{sT0}, {BIG}, s{sFLAG}")
    e(f"v_mov_b32 v{vT+8}, s{sNON}")
    e(f"v_lshlrev_b32 v{vT+9}, 24, v{vL}")
    return e(f"buffer_store_dword v{vT+8}, v{vT+9}, {S4(SWS)}, s{sT0} offen offset:{4*word} sc1")
def dft_flag_addr(v, word):
    e(f"v_lshrrev_b32 v{v}, 1, v{vL}")
    e(f"v_lshlrev_b32 v{v}, 11, v{v}")
    e(f"v_and_b32 v{v+1}, 1, v{vL}")
    e(f"v_lshl_add_u32 v{v}, v{v+1}, 7, v{v}")
    e(f"v_add_u32 v{v}, {FL_OFF + 14*128 + 4*word}, v{v}")
def bf16r(d, s):
    e(f"v_cvt_pk_bf16_f32 v{d}, v{s}, v{s}"); e(f"v_lshlrev_b32 v{d}, 16, v{d}")

hdr = open("recurrent_scan__spectral_fnet__geglu_ffn__prompt.s.ref").read().split("\n")
hdr = [l for l in hdr if l.startswith(";") and "@launch" not in l]
for l in hdr: g.raw(l)
g.raw("; @launch grid=(256,1,1) block=(512,1,1) lds=163840")
g.raw('.amdgcn_target "amdgcn-amd-amdhsa--gfx950"\n.text')
g.raw(f".globl {KN}\n.p2align 8\n.type {KN},@function\n{KN}:")
e("s_cmp_ge_u32 s2, 0x100")
e("s_cbranch_scc1 L_end")
e("s_load_dwordx16 s[16:31], s[0:1], 0")
e("s_load_dwordx8 s[32:39], s[0:1], 64")
e("s_memrealtime s[74:75]")
e(f"s_getpc_b64 s[{sPC}:{sPC+1}]")
g.label("L_pc")
e(f"v_lshlrev_b32 v{vT}, 6, v0")
e(f"v_min_u32 v{vT}, L_end-L_pc, v{vT}")
e(f"global_load_dword v63, v{vT}, s[{sPC}:{sPC+1}]")
e(f"v_lshrrev_b32 v{vT+2}, 6, v0")
e(f"v_and_b32 v{vL}, 63, v0")
e(f"v_readfirstlane_b32 s{sW}, v{vT+2}")
if STAMPS:
    e("s_memrealtime s[100:101]"); g.wait_all(vm=False); e(f"s_mov_b32 s{sST}, s100")
    e("s_memtime s[100:101]"); g.wait_all(vm=False); e(f"s_mov_b32 s{sST+18}, s100")
e(f"s_and_b32 s{sT0}, s2, 7")
e(f"s_lshr_b32 s{sT1}, s2, 3")
e(f"s_and_b32 s{sT2}, s{sT0}, 1")
e(f"s_lshr_b32 s{sT3}, s{sT0}, 1")
e(f"s_mul_i32 s{sT4}, s{sT3}, 28")
e(f"s_add_u32 s{sT4}, s{sT4}, s{sT1}")
e(f"s_lshr_b32 s{sCB}, s{sT4}, 3")
e(f"s_and_b32 s{sRB}, s{sT4}, 7")
e(f"s_mul_i32 s{sR2}, s{sT1}, 37")
e(f"s_lshr_b32 s{sR2}, s{sR2}, 8")
e(f"s_mul_i32 s{sC2}, s{sR2}, 7")
e(f"s_sub_u32 s{sC2}, s{sT1}, s{sC2}")
e(f"s_lshl_b32 s{sT0}, s{sT2}, 4")
e(f"s_add_u32 s{sR2}, s{sR2}, s{sT0}")
e(f"s_lshl_b32 s{sT0}, s{sT3}, 2")
e(f"s_add_u32 s{sR2}, s{sR2}, s{sT0}")
e(f"s_and_b32 s{sT0}, s{sT3}, 1")
e(f"s_add_u32 s{sT0}, s{sT0}, 14")
e(f"s_lshr_b32 s{sT4}, s{sT3}, 1")
e(f"s_lshl_b32 s{sT4}, s{sT4}, 2")
e(f"s_add_u32 s{sT4}, s{sT4}, s{sT1}")
e(f"s_sub_u32 s{sT4}, s{sT4}, 28")
e(f"s_cmp_ge_u32 s{sT1}, 28")
e(f"s_cselect_b32 s{sCB}, s{sT0}, s{sCB}")
e(f"s_cselect_b32 s{sRB}, s{sT4}, s{sRB}")
e(f"s_lshl_b32 s{sT2}, s{sT2}, 3")
e(f"s_add_u32 s{sRB}, s{sRB}, s{sT2}")
e(f"s_lshl_b32 s{sFLAG}, s{sRB}, 4")
e(f"s_add_u32 s{sFLAG}, s{sFLAG}, s{sCB}")
e(f"s_lshl_b32 s{sFLAG}, s{sFLAG}, 7")
e(f"s_add_u32 s{sFLAG}, s{sFLAG}, {FL_OFF}")
PH = {1: [0], 2: [0, 4], 4: [0, 2, 4, 6], 8: [0, 1, 2, 3, 4, 5, 6, 3]}[ROT]
packed = sum(p << (4 * i) for i, p in enumerate(PH))
e(f"s_add_u32 s{sCH}, s{sRB}, s{sCB}")
e(f"s_and_b32 s{sCH}, s{sCH}, {ROT-1}")
e(f"s_lshl_b32 s{sCH}, s{sCH}, 2")
e(f"s_lshr_b32 s{sCH}, {packed}, s{sCH}")
e(f"s_and_b32 s{sCH}, s{sCH}, 15")
e(f"v_lshlrev_b32 v{vL16}, 4, v{vL}")
e(f"v_lshlrev_b32 v{vL4}, 2, v{vL}")
e(f"v_lshrrev_b32 v{vT+2}, 3, v{vL}")
e(f"v_lshrrev_b32 v{vT+3}, 4, v{vL}")
e(f"v_and_b32 v{vT+4}, 7, v{vL}")
e(f"v_xor_b32 v{vT+4}, v{vT+4}, v{vT+3}")
e(f"v_lshlrev_b32 v{vSW}, 4, v{vT+4}")
e(f"v_mul_u32_u24 v{vXD0}, 57344, v{vT+2}")
e(f"v_add_u32 v{vXD0}, v{vXD0}, v{vSW}")
e(f"v_xor_b32 v{vXD1}, 64, v{vXD0}")
e(f"v_add_u32 v{vXD1}, {8*57344}, v{vXD1}")
e(f"s_lshr_b32 s{sT0}, s{sW}, 1")
e(f"s_lshl_b32 s{sXO}, s{sRB}, 2")
e(f"s_add_u32 s{sXO}, s{sXO}, s{sT0}")
e(f"s_mul_i32 s{sXO}, s{sXO}, 896")
e(f"s_and_b32 s{sT0}, s{sW}, 1")
e(f"s_mul_i32 s{sT0}, s{sT0}, {16*57344}")
e(f"s_add_u32 s{sXO}, s{sXO}, s{sT0}")
e(f"s_lshl_b32 s{sT0}, s{sCH}, 7")
e(f"s_add_u32 s{sXO}, s{sXO}, s{sT0}")
e(f"s_lshl_b32 s{sMX}, s{sW}, 11")
e(f"s_lshl_b32 s{sT0}, s{sCB}, 3")
e(f"s_add_u32 s{sT0}, s{sT0}, s{sW}")
e(f"s_and_b32 s{sT2}, s{sT0}, 31")
e(f"s_lshl_b32 s{sT2}, s{sT2}, 6")
e(f"s_lshr_b32 s{sT3}, s{sT0}, 5")
e(f"s_add_u32 s{sT2}, s{sT2}, s{sT3}")
e(f"s_lshl_b32 s{sT3}, s{sRB}, 2")
e(f"s_add_u32 s{sT2}, s{sT2}, s{sT3}")
e(f"s_mul_i32 s{sT2}, s{sT2}, 896")
e(f"s_lshl_b32 s{sT3}, s{sRB}, 7")
e(f"s_add_u32 s{sT3}, s{sT3}, s{sT0}")
e(f"s_lshl_b32 s{sT3}, s{sT3}, 3")
e(f"s_add_u32 s{sHO}, s{sT3}, {XST}")
e(f"v_mov_b32 v{vT+5}, {BIG}")
e(f"v_cmp_gt_u32 vcc, 56, v{vL}")
e(f"v_cndmask_b32 v{vT+5}, v{vT+5}, v{vL16}, vcc")
g.wait_all(vm=False)
srd(SX, pX, 1835008)
SR = 32
t_row = e(f"buffer_load_dwordx4 {vr(SR,4)}, v{vT+5}, {S4(SX)}, s{sT2} offen")
srd(SD, pDBG, 256)
e(f"s_or_b32 s74, s74, 1")
e(f"s_lshr_b32 s{sT0}, s2, 3")
e(f"s_or_b32 s{sT0}, s{sT0}, s{sW}")
e(f"s_lshl_b32 s{sT0}, s{sT0}, 12")
e(f"v_mov_b32 v60, s74"); e(f"v_mov_b32 v61, 0")
e(f"v_lshlrev_b32 v{vT+6}, 12, v{vL}")
e(f"buffer_atomic_cmpswap v[60:61], v{vT+6}, {S4(SD)}, s{sT0} offen sc1")
srd(SWS, pWS, WS_SIZE)
e(f"s_cmp_ge_u32 s{sCB}, 14")
e("s_cbranch_scc1 L_dft")
snap_role = g.snapshot()

def dma(m0expr_s, m0imm, voff, srdb, soff, ioff=0, sc1=False):
    e(f"s_add_u32 m0, s{m0expr_s}, {m0imm - ioff}")
    return e(f"buffer_load_dwordx4 v{voff}, {S4(srdb)}, {soff} offen" + (f" offset:{ioff}" if ioff else "") + (" sc1" if sc1 else "") + " lds")

def stat_row():
    a, q, t = vT, vT + 1, vT + 2
    g.wait(t_row)
    e(f"s_mov_b32 s{sT0}, 0x3f803f80")
    e(f"v_mov_b32 v{a}, 0"); e(f"v_mov_b32 v{q}, 0")
    for i in range(4):
        e(f"v_dot2c_f32_bf16 v{a}, s{sT0}, v{SR+i}")
        e(f"v_dot2c_f32_bf16 v{q}, v{SR+i}, v{SR+i}")
    e(f"v_permlane32_swap_b32 v{a}, v{q}")
    e(f"v_add_f32 v{a}, v{a}, v{q}")
    e(f"v_mov_b32 v{t}, v{a}")
    e(f"v_permlane16_swap_b32 v{a}, v{t}")
    e(f"v_add_f32 v{a}, v{a}, v{t}")
    for sh in (8, 4, 2, 1):
        e(f"v_add_f32_dpp v{a}, v{a}, v{a} row_ror:{sh} row_mask:0xf bank_mask:0xf")
    e(f"v_mul_f32 v{a}, 0x3b124925, v{a}")
    e(f"v_mov_b32 v{q}, v{a}")
    e(f"v_permlane32_swap_b32 v{a}, v{q}")
    e(f"v_fma_f32 v{q}, -v{a}, v{a}, v{q}")
    e(f"v_max_f32 v{q}, 0, v{q}")
    bf16r(a, a); bf16r(q, q)
    e(f"v_add_f32 v{q}, 0x3727c5ac, v{q}")
    bf16r(q, q)
    e(f"v_sqrt_f32 v{q}, v{q}")
    bf16r(q, q)
    e(f"v_lshrrev_b32 v{a}, 16, v{a}")
    e(f"v_or_b32 v56, v{a}, v{q}")
def tag_issue():
    return e(f"buffer_load_dword v57, v61, {S4(SD)}, 0 offen sc1")
def stat_store():
    spin(tk["tag"], tag_issue, lambda: e(f"v_cmp_eq_u32 vcc, 0, v57"), sleep=2)
    e(f"v_readfirstlane_b32 s{sNON}, v57")
    e(f"v_lshlrev_b32 v{vT}, 24, v{vL}")
    e(f"buffer_store_dwordx2 v[56:57], v{vT}, {S4(SWS)}, s{sHO} offen sc1")
vG = 44
def stat_loads():
    e(f"buffer_load_dwordx2 v[{vG}:{vG+1}], v43, {S4(SWS)}, 0 offen sc1")
    return e(f"buffer_load_dwordx2 v[{vG+2}:{vG+3}], v43, {S4(SWS)}, 0 offen offset:256 sc1")
def stat_fetch():
    e(f"s_and_b32 s{sT0}, s{sW}, 1")
    e(f"s_lshl_b32 s{sT0}, s{sT0}, 9")
    e(f"s_lshl_b32 s{sT1}, s{sRB}, 10")
    e(f"s_add_u32 s{sT0}, s{sT0}, s{sT1}")
    e(f"s_add_u32 s{sT0}, s{sT0}, {XST}")
    e(f"v_and_b32 v43, 31, v{vL}")
    e(f"v_lshl_add_u32 v43, v43, 3, s{sT0}")
    tk["st"] = stat_loads()
def stat_check():
    def test():
        e(f"v_xor_b32 v{vT}, s{sNON}, v{vG+1}")
        e(f"v_xor_b32 v{vT+1}, s{sNON}, v{vG+3}")
        e(f"v_or_b32 v{vT}, v{vT}, v{vT+1}")
        e(f"v_cmp_ne_u32 vcc, 0, v{vT}")
    spin(tk["st"], stat_loads, test)
    for si in range(2):
        e(f"v_and_b32 v{vG+2*si+1}, 0xffff0000, v{vG+2*si}")
        e(f"v_lshlrev_b32 v{vG+2*si}, 16, v{vG+2*si}")
tk = {}

def x_read_addrs(perm):
    m, row, hf = vT, vT + 1, vT + 2
    e(f"v_and_b32 v{m}, 31, v{vL}")
    if perm:
        e(f"v_and_b32 v{row}, 19, v{m}")
        e(f"v_bfe_u32 v{hf}, v{m}, 2, 1"); e(f"v_lshl_or_b32 v{row}, v{hf}, 3, v{row}")
        e(f"v_bfe_u32 v{hf}, v{m}, 3, 1"); e(f"v_lshl_or_b32 v{row}, v{hf}, 2, v{row}")
    else:
        e(f"v_mov_b32 v{row}, v{m}")
    e(f"v_lshrrev_b32 v{hf}, 5, v{vL}")
    e(f"v_bfe_u32 v{vT+3}, v{row}, 1, 3")
    e(f"v_xor_b32 v{vT+3}, v{vT+3}, v{hf}")
    e(f"v_lshlrev_b32 v{vT+3}, 4, v{vT+3}")
    e(f"v_lshl_or_b32 v{vT+3}, v{row}, 7, v{vT+3}")
    return vT + 3

def phase1(dft):
    def issue_x(c, b):
        return dma(sMX, XB + (c % 3) * STG + b * 1024, vXD0 + b, SX, f"s{sXO}")
    def advance(regs):
        e(f"s_add_u32 s{sCH}, s{sCH}, 1")
        e(f"s_cmp_eq_u32 s{sCH}, 7")
        e(f"s_cselect_b32 s{sT4}, -6, 1")
        e(f"s_cselect_b32 s{sCH}, 0, s{sCH}")
        for r, step in regs:
            e(f"s_mul_i32 s{sT3}, s{sT4}, {step}")
            e(f"s_add_u32 s{r}, s{r}, s{sT3}")
    if not dft:
        srd(SW0, pWG, 1605632); srd(SW1, pWU, 1605632)
        rho, s8 = vT, vT + 1
        e(f"v_lshrrev_b32 v{rho}, 4, v{vL}")
        e(f"v_lshrrev_b32 v{vT+2}, 3, v{vL}")
        e(f"v_mul_u32_u24 v{vWD0}, 3584, v{vT+2}")
        e(f"v_bfe_u32 v{s8}, v{vL}, 1, 2")
        e(f"v_and_b32 v{rho}, 1, v{rho}")
        e(f"v_xor_b32 v{s8}, v{s8}, v{rho}")
        e(f"v_lshl_add_u32 v{vWD0}, v{s8}, 5, v{vWD0}")
        e(f"v_and_b32 v{s8}, 1, v{vL}")
        e(f"v_lshl_add_u32 v{vWD0}, v{s8}, 4, v{vWD0}")
        e(f"v_xor_b32 v{vWD1}, 64, v{vWD0}")
        e(f"s_mul_i32 s{sWK}, s{sW}, {8*3584}")
        e(f"s_lshl_b32 s{sT0}, s{sCB}, 8")
        e(f"s_add_u32 s{sWK}, s{sWK}, s{sT0}")
        e(f"s_mul_i32 s{sT0}, s{sCH}, {64*3584}")
        e(f"s_add_u32 s{sWK}, s{sWK}, s{sT0}")
        e(f"s_mov_b32 s{sMW}, s{sMX}")
        def issue_w(c, i):
            gam, mu = i >> 1, i & 1
            t = dma(sMW, gam * GAM + (c % 3) * STG + mu * 1024, vWD0 + mu, SW0 + 4 * mu, f"s{sWK}", ioff=gam * 128)
            if i == 3 and c < 6: advance([(sXO, 128), (sWK, 64*3584)])
            return t
    else:
        e(f"s_cmp_eq_u32 s{sCB}, 14")
        e(f"s_cselect_b32 s{SW0}, s{pCD}, s{pSD}")
        e(f"s_cselect_b32 s{SW0+1}, s{pCD+1}, s{pSD+1}")
        e(f"s_and_b32 s{SW0+1}, s{SW0+1}, 0xffff")
        e(f"s_mov_b32 s{SW0+2}, 401408"); e(f"s_mov_b32 s{SW0+3}, 0x20000")
        e(f"v_lshrrev_b32 v{vT}, 3, v{vL}")
        e(f"v_mul_u32_u24 v{vWD0}, 896, v{vT}")
        e(f"v_add_u32 v{vWD0}, v{vWD0}, v{vSW}")
        e(f"v_xor_b32 v{vWD1}, 64, v{vWD0}")
        e(f"v_add_u32 v{vWD1}, {8*896}, v{vWD1}")
        e(f"s_mul_i32 s{sWK}, s{sW}, {32*896}")
        e(f"s_lshl_b32 s{sT0}, s{sCH}, 7")
        e(f"s_add_u32 s{sWK}, s{sWK}, s{sT0}")
        e(f"s_add_u32 s{sF1}, s{sWK}, {16*896}")
        e(f"s_lshr_b32 s{sT0}, s{sW}, 2")
        e(f"s_mul_i32 s{sMW}, s{sT0}, {GAM}")
        e(f"s_and_b32 s{sT0}, s{sW}, 3")
        e(f"s_lshl_b32 s{sT0}, s{sT0}, 12")
        e(f"s_add_u32 s{sMW}, s{sMW}, s{sT0}")
        def issue_w(c, i):
            t = dma(sMW, (c % 3) * STG + i * 1024, vWD0 + (i & 1), SW0, f"s{sWK if i < 2 else sF1}")
            if i == 3 and c < 6: advance([(sXO, 128), (sWK, 128), (sF1, 128)])
            return t
    chunk_tok = {}
    def chunk_ops(c):
        ops = [lambda b=b: issue_x(c, b) for b in range(2)] + [lambda i=i: issue_w(c, i) for i in range(4)]
        def last(): chunk_tok[c] = g.lastvm()
        return ops, last
    for c in range(3):
        ops, last = chunk_ops(c)
        for o in ops: o()
        last()
        if c == 0: tk["tag"] = tag_issue()
    stamp(1)
    a0 = x_read_addrs(perm=dft)
    e(f"s_and_b32 s{sT0}, s{sW}, 1")
    e(f"s_lshl_b32 s{sT1}, s{sT0}, 13")
    e(f"s_add_u32 s{sT1}, s{sT1}, {XB}")
    e(f"v_add_u32 v{vXR}, s{sT1}, v{a0}")
    for k in range(1, 4): e(f"v_xor_b32 v{vXR+k}, {k << 5}, v{vXR}")
    e(f"s_lshr_b32 s{sT1}, s{sW}, 2")
    e(f"s_mul_i32 s{sT1}, s{sT1}, {GAM}")
    e(f"s_and_b32 s{sT2}, s{sW}, 3")
    if not dft:
        t0, t1, t2 = vT, vT + 1, vT + 2
        e(f"v_lshrrev_b32 v{t0}, 4, v{vL}")
        e(f"v_lshlrev_b32 v{vTR}, 10, v{t0}")
        e(f"v_bfe_u32 v{t1}, v{vL}, 3, 1")
        e(f"v_lshl_or_b32 v{vTR}, v{t1}, 8, v{vTR}")
        e(f"v_lshl_or_b32 v{vTR}, v{t1}, 5, v{vTR}")
        e(f"v_bfe_u32 v{t1}, v{vL}, 2, 1")
        e(f"v_lshl_or_b32 v{vTR}, v{t1}, 7, v{vTR}")
        e(f"v_and_b32 v{t1}, 1, v{t0}")
        e(f"v_lshl_or_b32 v{vTR}, v{t1}, 6, v{vTR}")
        e(f"v_and_b32 v{t1}, 1, v{vL}")
        e(f"v_lshl_or_b32 v{vTR}, v{t1}, 4, v{vTR}")
        e(f"v_bfe_u32 v{t1}, v{vL}, 1, 1")
        e(f"v_lshl_or_b32 v{vTR}, v{t1}, 3, v{vTR}")
        e(f"s_lshl_b32 s{sT2}, s{sT2}, 5")
        e(f"v_xor_b32 v{vWR}, s{sT2}, v{vTR}")
        e(f"v_add_u32 v{vWR}, s{sT1}, v{vWR}")
        e(f"v_xor_b32 v{vWR+1}, 32, v{vWR}")
    else:
        a1 = x_read_addrs(perm=False)
        e(f"s_lshl_b32 s{sT2}, s{sT2}, 12")
        e(f"s_add_u32 s{sT1}, s{sT1}, s{sT2}")
        e(f"v_add_u32 v{vWR}, s{sT1}, v{a1}")
        for k in range(1, 4): e(f"v_xor_b32 v{vWR+k}, {k << 5}, v{vWR}")
        for k in range(4): e(f"v_xor_b32 v{36+k}, 4096, v{vWR+k}")
    e(f"v_mov_b32 v{vCS0}, 0"); e(f"v_mov_b32 v{vCS1}, 0")
    stat_row()
    stamp(2)

    def reads(t):
        c, j = divmod(t, 4); s = t & 1; st = (c % 3) * STG
        L = []
        for si in range(2):
            L.append(lambda si=si: e(f"ds_read_b128 {vr(xf(s,si),4)}, v{vXR+j} offset:{st + si*4096}"))
        for ui in range(2):
            if not dft:
                for i in range(2):
                    L.append(lambda ui=ui, i=i: e(f"ds_read_b64_tr_b16 {vr(wf(s,ui)+2*i,2)}, v{vWR+ui} offset:{st + j*4096 + i*512}"))
            else:
                L.append(lambda ui=ui: e(f"ds_read_b128 {vr(wf(s,ui),4)}, v{(vWR if ui == 0 else 36)+j} offset:{st}"))
        return L
    def mfma(t, ui, si):
        s = t & 1
        A, B = (wf(s, ui), xf(s, si)) if not dft else (xf(s, si), wf(s, ui))
        c = "0" if t == 0 else vr(acc(ui, si), 16)
        e(f"v_mfma_f32_32x32x16_bf16 {vr(acc(ui,si),16)}, {vr(A,4)}, {vr(B,4)}, {c}")
    def colsum(t, i):
        r = wf(t & 1, 0) + i
        e(f"v_lshlrev_b32 v{vT+10}, 16, v{r}")
        e(f"v_and_b32 v40, 0xffff0000, v{r}")
        e(f"v_add_f32 v{vCS0}, v{vCS0}, v{vT+10}")
        e(f"v_add_f32 v{vCS1}, v{vCS1}, v{40}")

    side = {}
    def at(t, gap, f): side.setdefault((t, gap), []).append(f)
    at(1, 0, stat_store)
    at(16, 0, stat_fetch)
    return dict(chunk_ops=chunk_ops, chunk_tok=chunk_tok, reads=reads, mfma=mfma, colsum=colsum, side=side, at=at)

def run_loop(P, extra_chunk):
    chunk_tok, side = P["chunk_tok"], P["side"]
    g.wait(chunk_tok[0]); e("s_barrier")
    stamp(3)
    for f in P["reads"](0): f()
    pend = []
    for t in range(28):
        c, j = divmod(t, 4)
        g.wait(g.lastlg())
        nxt = P["reads"](t + 1) if t < 27 else []
        order = [(0, 0), (1, 0), (0, 1), (1, 1)]
        for gap, (ui, si) in enumerate(order):
            if j == 3 and gap == 1:
                for f in side.get((t, "prebar"), []): f()
                toks = [chunk_tok[c + 1]] if c + 1 in chunk_tok and c < 6 else []
                g.wait(*toks, g.lastlg())
                e("s_barrier")
                if "nolstamp" not in OPT: stamp(11 + c)
                if c + 3 < 7:
                    ops, last = P["chunk_ops"](c + 3); pend = ops + [last]
                else:
                    pend = extra_chunk(c + 3)
            P["mfma"](t, ui, si)
            lo = 1 if j == 3 else 0
            if gap >= lo:
                k = 2 if (j != 3 or len(nxt) <= 6) else 2
                for _ in range(k):
                    if nxt: nxt.pop(0)()
            if "nocs" not in OPT: P["colsum"](t, gap)
            if pend and gap in (1, 3) and not (j == 3 and gap == 1):
                pend.pop(0)()
                if len(pend) == 1 and pend[0].__name__ == "last": pend.pop(0)()
            for f in side.get((t, gap), []): f()
        while nxt: nxt.pop(0)()
    return pend

P = phase1(dft=False)
at = P["at"]
vDD0, vDD1 = 41, 42
sD0, sD1, sD2, sD3, sDT = sF1, 77, 26, 27, 68
def wd_setup():
    srd(SWD, pWD, 1605632)
    e(f"v_lshrrev_b32 v{vT}, 3, v{vL}")
    e(f"v_mul_u32_u24 v{vDD0}, 896, v{vT}")
    e(f"v_bfe_u32 v{vT}, v{vL}, 2, 1")
    e(f"v_bfe_u32 v{vT+1}, v{vL}, 4, 1")
    e(f"v_xor_b32 v{vT}, v{vT}, v{vT+1}")
    e(f"v_lshl_add_u32 v{vDD0}, v{vT}, 6, v{vDD0}")
    e(f"v_and_b32 v{vT}, 3, v{vL}")
    e(f"v_lshl_add_u32 v{vDD0}, v{vT}, 4, v{vDD0}")
    e(f"v_add_u32 v{vDD1}, {8*896}, v{vDD0}")
    e(f"s_lshl_b32 s{sT0}, s{sC2}, 3")
    e(f"s_add_u32 s{sD0}, s{sT0}, s{sW}")
    e(f"s_and_b32 s{sD1}, s{sW}, 3")
    e(f"s_add_u32 s{sD1}, s{sD1}, s{sT0}")
    e(f"s_add_u32 s{sD1}, s{sD1}, 8")
    e(f"s_lshl_b32 s{sD2}, s{sC2}, 7")
    e(f"s_lshr_b32 s{sD3}, s{sW}, 2")
    e(f"s_mul_i32 s{sD3}, s{sD3}, {56*16*896}")
    e(f"s_add_u32 s{sD3}, s{sD3}, s{sD2}")
at(9, 0, wd_setup)
def wd_dma(ldsoff, kind, koff, b):
    if b == 0:
        e(f"s_add_u32 s{sDT}, s{sD1 if kind == 2 else sD0}, {koff}")
        e(f"s_cmp_ge_u32 s{sDT}, 56")
        e(f"s_cselect_b32 s{sT0}, {0 if kind == 1 else -56}, {56 if kind == 1 else 0}")
        e(f"s_add_u32 s{sDT}, s{sDT}, s{sT0}")
        e(f"s_mul_i32 s{sDT}, s{sDT}, {16*896}")
        e(f"s_add_u32 s{sDT}, s{sDT}, s{sD3 if kind == 2 else sD2}")
    return dma(sMX, ldsoff + b * 1024, vDD0 + b, SWD, f"s{sDT}")
def extra_ffn(c):
    i = c - 7; st = (c % 3) * STG
    L = []
    for b in range(2): L.append(lambda b=b: wd_dma(st, 0, 12 * i, b))
    for b in range(2): L.append(lambda b=b: wd_dma(GAM + st, 1, 12 * i, b))
    for b in range(2): L.append(lambda b=b: wd_dma(XB + st, 2, 12 * i, b))
    return L
pend = run_loop(P, extra_ffn)
stamp(4)
for f in pend: f()
t_wd9 = g.lastvm()
def cs_publish():
    e(f"v_add_f32 v{vCS0}, v{vCS0}, v{vCS1}")
    e(f"v_mov_b32 v{vCS1}, v{vCS0}")
    e(f"v_permlane32_swap_b32 v{vCS0}, v{vCS1}")
    e(f"v_add_f32 v{vCS0}, v{vCS0}, v{vCS1}")
    e(f"s_lshl_b32 s{sT0}, s{sW}, 8")
    e(f"s_add_u32 s{sT0}, s{sT0}, {MISC}")
    e(f"v_add_u32 v{vT}, s{sT0}, v{vL4}")
    t = e(f"ds_write_b32 v{vT}, v{vCS0}")
    g.wait(t); e("s_barrier")
cs_publish()
CS = 160
e(f"v_lshrrev_b32 v{vT}, 5, v{vL}")
e(f"v_lshlrev_b32 v{vT}, 4, v{vT}")
e(f"v_add_u32 v{vT}, s{sT0}, v{vT}")
e(f"v_xor_b32 v{vT+1}, 256, v{vT}")
tcs = {}
for ui in range(2):
    for q in range(4):
        tcs[ui] = e(f"ds_read_b128 {vr(CS+ui*16+q*4,4)}, v{vT+ui} offset:{q*32}")
vK0, vK1, vS2 = 48, 50, 52
vT += 2; stat_check(); vT -= 2
for si in range(2):
    e(f"v_rcp_f32 v{vT+2}, v{vG+2*si+1}")
    e(f"v_mul_f32 v{vS2+si}, v{vG+2*si+1}, v{vG+2*si+1}")
    e(f"v_mul_f32 v{vK0+si}, 0xc0135761, v{vT+2}")
    e(f"v_mul_f32 v{vT+3}, v{vT+2}, v{vT+2}")
    e(f"v_mul_f32 v{vT+3}, 0x3d372713, v{vT+3}")
    e(f"v_mul_f32 v{vK1+si}, v{vK0+si}, v{vT+3}")
e(f"s_and_b32 s{sT0}, s{sW}, 1")
e(f"s_lshl_b32 s{sT0}, s{sT0}, 1")
e(f"s_lshl_b32 s{sT1}, s{sRB}, 2")
e(f"s_add_u32 s{sT0}, s{sT0}, s{sT1}")
e(f"s_mul_i32 s{sT0}, s{sT0}, 112")
e(f"s_lshl_b32 s{sT1}, s{sCB}, 3")
e(f"s_add_u32 s{sT0}, s{sT0}, s{sT1}")
e(f"s_add_u32 s{sT2}, s{sT0}, s{sW}")
e(f"s_xor_b32 s{sT1}, s{sW}, 1")
e(f"s_add_u32 s{sT3}, s{sT0}, s{sT1}")
e(f"s_lshl_b32 s{sT2}, s{sT2}, 10")
e(f"s_lshl_b32 s{sT3}, s{sT3}, 10")
TM = 192
for ui in range(2):
    g.wait(tcs[ui])
    for si in range(2):
        A = acc(ui, si); C = CS + ui * 16
        G_, U_, Q_ = TM, TM + 8, TM + 16
        PK = TM + 24 + ((ui * 2 + si) & 1) * 4
        for j in range(8): e(f"v_fma_f32 v{G_+j}, -v{vG+2*si}, v{C+j}, v{A+j}")
        for j in range(8): e(f"v_mul_f32 v{Q_+j}, v{G_+j}, v{G_+j}")
        for j in range(8): e(f"v_fma_f32 v{Q_+j}, v{Q_+j}, v{vK1+si}, v{vK0+si}")
        for j in range(8): e(f"v_mul_f32 v{Q_+j}, v{Q_+j}, v{G_+j}")
        for j in range(8):
            e(f"v_exp_f32 v{Q_+j}, v{Q_+j}")
            e(f"v_fma_f32 v{U_+j}, -v{vG+2*si}, v{C+8+j}, v{A+8+j}")
        for j in range(8): e(f"v_fma_f32 v{Q_+j}, v{Q_+j}, v{vS2+si}, v{vS2+si}")
        for j in range(8):
            e(f"v_rcp_f32 v{Q_+j}, v{Q_+j}")
            e(f"v_mul_f32 v{U_+j}, v{U_+j}, v{G_+j}")
        for j in range(8): e(f"v_mul_f32 v{U_+j}, v{U_+j}, v{Q_+j}")
        for j in range(4): e(f"v_cvt_pk_bf16_f32 v{PK+j}, v{U_+2*j}, v{U_+2*j+1}")
        so = sT2 if ui == 0 else sT3
        if si == 1: e(f"s_add_u32 s{so}, s{so}, {112*1024}")
        e(f"buffer_store_dwordx4 {vr(PK,4)}, v{vL16}, {S4(SWS)}, s{so} offen sc1")
stamp(5)
g.wait(t_wd9); e("s_barrier")
WDR, ACC2, HF = 64, 48, 32
def wdr(k): return WDR + 4 * (k % 48)
vA1, vA2, vA3, vH0, vH1 = 5, 6, 7, 8, 9
t1 = vT
e(f"v_lshrrev_b32 v{t1}, 5, v{vL}")
e(f"v_lshlrev_b32 v{vTR}, 10, v{t1}")
e(f"v_bfe_u32 v{t1}, v{vL}, 3, 1")
e(f"v_lshl_or_b32 v{vTR}, v{t1}, 8, v{vTR}")
e(f"v_lshl_or_b32 v{vTR}, v{t1}, 6, v{vTR}")
e(f"v_bfe_u32 v{t1}, v{vL}, 2, 1")
e(f"v_lshl_or_b32 v{vTR}, v{t1}, 7, v{vTR}")
e(f"v_bfe_u32 v{t1}, v{vL}, 4, 1")
e(f"v_lshl_or_b32 v{vTR}, v{t1}, 5, v{vTR}")
e(f"v_and_b32 v{t1}, 1, v{vL}")
e(f"v_lshl_or_b32 v{vTR}, v{t1}, 4, v{vTR}")
e(f"v_bfe_u32 v{t1}, v{vL}, 1, 1")
e(f"v_lshl_or_b32 v{vTR}, v{t1}, 3, v{vTR}")
e(f"s_and_b32 s{sT0}, s{sW}, 1")
e(f"s_lshl_b32 s{sT0}, s{sT0}, 6")
e(f"v_xor_b32 v{vTR}, s{sT0}, v{vTR}")
e(f"s_lshr_b32 s{sT1}, s{sW}, 2")
e(f"s_mul_i32 s{sT0}, s{sT1}, {GAM}")
e(f"v_add_u32 v{vA1}, s{sT0}, v{vTR}")
e(f"s_lshl_b32 s{sT0}, s{sT1}, 13")
e(f"s_add_u32 s{sT0}, s{sT0}, {XB}")
e(f"v_add_u32 v{vA2}, s{sT0}, v{vTR}")
def tr(dst, a, off):
    e(f"ds_read_b64_tr_b16 {vr(dst,2)}, v{a} offset:{off}")
    return e(f"ds_read_b64_tr_b16 {vr(dst+2,2)}, v{a} offset:{off+512}")
for i in range(3):
    st = ((7 + i) % 3) * STG
    for k in range(8): tr(wdr(12 * i + k), vA1, st + k * 2048)
    for k in range(4): tr(wdr(12 * i + 8 + k), vA2, st + k * 2048)
g.wait_all(); e("s_barrier")
flag_store(0)
stamp(6)
MID, LATE = 65536, 131072
for b in range(2): wd_dma(MID, 0, 36, b)
for b in range(2): wd_dma(MID + 16384, 1, 36, b)
for b in range(2): wd_dma(MID + 32768, 2, 36, b)
for b in range(2): wd_dma(LATE, 0, 48, b)
for b in range(2): t_wd = wd_dma(LATE + 16384, 1, 48, b)
e(f"s_lshr_b32 s{sT0}, s{sR2}, 1")
e(f"s_lshl_b32 s{sT0}, s{sT0}, 11")
e(f"s_add_u32 s{sT0}, s{sT0}, {FL_OFF}")
e(f"v_lshl_add_u32 v{vT}, v{vL}, 7, s{sT0}")
poll_setup(vT, 14)
e(f"s_lshr_b32 s{sT1}, s{sW}, 2")
e(f"s_lshl_b32 s{sT0}, s{sT1}, 14")
e(f"s_add_u32 s{sT0}, s{sT0}, {MID}")
e(f"v_add_u32 v{vA1}, s{sT0}, v{vTR}")
e(f"s_add_u32 s{sT0}, s{sT0}, {LATE-MID}")
e(f"v_add_u32 v{vA3}, s{sT0}, v{vTR}")
e(f"s_lshl_b32 s{sT0}, s{sT1}, 13")
e(f"s_add_u32 s{sT0}, s{sT0}, {MID+32768}")
e(f"v_add_u32 v{vA2}, s{sT0}, v{vTR}")
e(f"s_bfe_u32 s{sT0}, s{sW}, 0x10001")
e(f"s_lshl_b32 s{sHO}, s{sR2}, 1")
e(f"s_add_u32 s{sHO}, s{sHO}, s{sT0}")
e(f"s_mov_b32 s{sK0}, s{sHO}")
e(f"s_mul_i32 s{sHO}, s{sHO}, 112")
e(f"s_mul_i32 s{sT0}, s{sT1}, 56")
e(f"s_add_u32 s{sHO}, s{sHO}, s{sT0}")
e(f"s_and_b32 s{sT0}, s{sW}, 1")
e(f"s_lshl_b32 s{sT0}, s{sT0}, 2")
e(f"s_add_u32 s{sHO}, s{sHO}, s{sT0}")
e(f"s_lshl_b32 s{sT0}, s{sC2}, 3")
e(f"s_add_u32 s{sHO}, s{sHO}, s{sT0}")
e(f"s_lshl_b32 s{sHO}, s{sHO}, 10")
e(f"s_mov_b32 s{sCH}, s{sC2}")
e(f"s_lshl_b32 s{sMW}, s{sW}, 12")
e(f"s_lshr_b32 s{sT0}, s{sW}, 1")
e(f"s_lshl_b32 s{sT0}, s{sT0}, 13")
e(f"v_add_u32 v{vH0}, s{sT0}, v{vL16}")
e(f"v_add_u32 v{vH1}, 0x10000, v{vH0}")
htok = {}
def h_issue(c):
    e(f"s_add_u32 m0, s{sMW}, {(c % 4) * 32768}")
    for n in range(4):
        htok[c] = e(f"buffer_load_dwordx4 v{vL16}, {S4(SWS)}, s{sHO} offen" + (f" offset:{n*1024}" if n else "") + " sc1 lds")
    e(f"s_add_u32 s{sCH}, s{sCH}, 1")
    e(f"s_cmp_eq_u32 s{sCH}, 7")
    e(f"s_cselect_b32 s{sT4}, -6, 1")
    e(f"s_lshl_b32 s{sT4}, s{sT4}, 13")
    e(f"s_add_u32 s{sHO}, s{sHO}, s{sT4}")
g.wait(t_wd); e("s_barrier")
tp = poll_issue()
for k in range(8): tr(wdr(36 + k), vA1, k * 2048)
for k in range(4): tr(wdr(44 + k), vA2, k * 2048)
poll_check(tp)
g.wait(g.lastlg()); e("s_barrier")
stamp(7)
for c in range(4): h_issue(c)
g.wait(htok[0]); e("s_barrier")
stamp(8)
def hread(k):
    c, n = divmod(k, 8); st = c % 4
    return e(f"ds_read_b128 {vr(HF+4*(k%4),4)}, v{vH0 + (st >> 1)} offset:{(st & 1)*32768 + n*1024}")
vXO, vYO, XV, YV = 10, 11, 64 + 32, 64 + 40
def fin_setup():
    srd(SO, pOUT, 1835008)
    i_, hf = vT, vT + 1
    e(f"v_and_b32 v{i_}, 31, v{vL}")
    e(f"v_lshrrev_b32 v{hf}, 5, v{vL}")
    e(f"v_mul_u32_u24 v{vXO}, 57344, v{i_}")
    e(f"v_lshl_add_u32 v{vXO}, v{hf}, 4, v{vXO}")
    e(f"s_lshl_b32 s{sT0}, s{sC2}, 6")
    e(f"s_and_b32 s{sT1}, s{sW}, 1")
    e(f"s_lshl_b32 s{sT1}, s{sT1}, 5")
    e(f"s_add_u32 s{sT0}, s{sT0}, s{sT1}")
    e(f"s_lshr_b32 s{sT1}, s{sW}, 2")
    e(f"s_lshl_b32 s{sT1}, s{sT1}, 4")
    e(f"s_add_u32 s{sT2}, s{sT0}, s{sT1}")
    e(f"s_mul_i32 s{sK1}, s{sK0}, 896")
    e(f"s_lshl_b32 s{sT1}, s{sT2}, 1")
    e(f"s_add_u32 s{sK1}, s{sK1}, s{sT1}")
    e(f"v_lshlrev_b32 v{vT+2}, 6, v{i_}")
    e(f"v_add_u32 v{vT+2}, s{sK0}, v{vT+2}")
    e(f"v_sub_u32 v{vT+3}, 0x800, v{vT+2}")
    e(f"v_and_b32 v{vT+3}, 0x7ff, v{vT+3}")
    e(f"v_lshl_add_u32 v{vT+4}, v{hf}, 3, s{sT2}")
    e(f"v_sub_u32 v{vT+5}, {448-7}, v{vT+4}")
    e(f"s_cmp_ge_u32 s{sT0}, 224")
    e(f"s_cselect_b64 vcc, -1, 0")
    e(f"s_cselect_b32 s{sT3}, 1, 0")
    e(f"v_cndmask_b32 v{vT+2}, v{vT+2}, v{vT+3}, vcc")
    e(f"v_cndmask_b32 v{vT+4}, v{vT+4}, v{vT+5}, vcc")
    e(f"v_lshlrev_b32 v{vYO}, 12, v{vT+4}")
    e(f"v_bfe_u32 v{vT+3}, v{vT+2}, 5, 1"); e(f"v_lshl_or_b32 v{vYO}, v{vT+3}, 11, v{vYO}")
    e(f"v_bfe_u32 v{vT+3}, v{vT+2}, 9, 2"); e(f"v_lshl_or_b32 v{vYO}, v{vT+3}, 9, v{vYO}")
    e(f"v_and_b32 v{vT+3}, 31, v{vT+2}"); e(f"v_lshl_or_b32 v{vYO}, v{vT+3}, 4, v{vYO}")
    e(f"v_bfe_u32 v{vT+3}, v{vT+2}, 6, 3"); e(f"v_lshl_or_b32 v{vYO}, v{vT+3}, 1, v{vYO}")
    e(f"s_mul_i32 s{sD0}, s{sT3}, {7*4096}")
    e(f"s_add_u32 s{sD0}, s{sD0}, {Y_OFF}")
    e(f"s_mul_i32 s{sD1}, s{sT3}, {-8192}")
    e(f"s_add_u32 s{sD1}, s{sD1}, 4096")
    dft_flag_addr(vT, 1)
    poll_setup(vT, 29)
rt = {}
for k in range(3): rt[k] = hread(k)
late = [lambda k=k: tr(wdr(48 + k), vA3, k * 2048) for k in range(8)]
for k in range(56):
    c, n = divmod(k, 8)
    if n == 5 and c < 6:
        if c == 4: poll_check(tp)
        g.wait(htok[c + 1], g.lastlg()); e("s_barrier")
    g.wait(rt[k])
    cc = "0" if k == 0 else vr(ACC2, 16)
    e(f"v_mfma_f32_32x32x16_bf16 {vr(ACC2,16)}, {vr(wdr(k),4)}, {vr(HF+4*(k%4),4)}, {cc}")
    if k + 3 < 56: rt[k + 3] = hread(k + 3)
    if n == 5 and c + 4 < 7: h_issue(c + 4)
    if k >= 8 and late: late.pop(0)()
    if k == 2: fin_setup()
    if k == 22:
        tx = e(f"buffer_load_dwordx4 {vr(XV,4)}, v{vXO}, {S4(SX)}, s{sK1} offen")
        tp = poll_issue()
    if k == 38:
        for j in range(8):
            ty = e(f"buffer_load_ushort v{YV+j}, v{vYO}, {S4(SWS)}, s{sD0} offen sc1")
            if j < 7: e(f"s_add_u32 s{sD0}, s{sD0}, s{sD1}")
stamp(9)
RED = 32768
e(f"s_lshl_b32 s{sT0}, s{sW}, 11")
e(f"s_add_u32 s{sT0}, s{sT0}, {RED}")
e(f"v_add_u32 v{vT}, s{sT0}, v{vL16}")
e(f"v_xor_b32 v{vT+1}, 8192, v{vT}")
e(f"s_cmp_ge_u32 s{sW}, 4")
e("s_cbranch_scc1 L_hi")
snap = g.snapshot()
e(f"ds_write_b128 v{vT}, {vr(ACC2+8,4)}")
e(f"ds_write_b128 v{vT}, {vr(ACC2+12,4)} offset:1024")
e("s_branch L_join")
g.label("L_hi")
g.restore(snap)
e(f"ds_write_b128 v{vT}, {vr(ACC2,4)}")
e(f"ds_write_b128 v{vT}, {vr(ACC2+4,4)} offset:1024")
for j in range(8): e(f"v_mov_b32 v{ACC2+j}, v{ACC2+8+j}")
g.label("L_join")
g.wait_all(vm=False); e("s_barrier")
e(f"ds_read_b128 {vr(HF,4)}, v{vT+1}")
e(f"ds_read_b128 {vr(HF+4,4)}, v{vT+1} offset:1024")
g.wait_all()
Q_ = HF + 8; XU = 64
for j in range(8): e(f"v_add_f32 v{ACC2+j}, v{ACC2+j}, v{HF+j}")
for j in range(8):
    e(f"v_mul_f32 v{Q_+j}, 0xbfb8aa3b, v{ACC2+j}")
    e(f"v_lshlrev_b32 v{YV+j}, 16, v{YV+j}")
for j in range(8):
    e(f"v_exp_f32 v{Q_+j}, v{Q_+j}")
    e(f"v_mul_f32 v{YV+j}, v{YV+j}, v{ACC2+j}")
for j in range(8):
    e(f"v_add_f32 v{Q_+j}, 1.0, v{Q_+j}")
    if j & 1: e(f"v_and_b32 v{XU+j}, 0xffff0000, v{XV+j//2}")
    else: e(f"v_lshlrev_b32 v{XU+j}, 16, v{XV+j//2}")
for j in range(8): e(f"v_rcp_f32 v{Q_+j}, v{Q_+j}")
for j in range(8): e(f"v_fma_f32 v{XU+j}, v{YV+j}, v{Q_+j}, v{XU+j}")
for j in range(4): e(f"v_cvt_pk_bf16_f32 v{HF+j}, v{XU+2*j}, v{XU+2*j+1}")
e(f"buffer_store_dwordx4 {vr(HF,4)}, v{vXO}, {S4(SO)}, s{sK1} offen")
def stamps_out():
    if not STAMPS: return
    g.wait_all(); stamp(10)
    e(f"s_cmp_lg_u32 s{sW}, 0"); e("s_cbranch_scc1 L_end")
    e(f"s_lshl_b32 s{sT0}, s2, 7"); e(f"s_add_u32 s{sT0}, s{sT0}, {TS_OFF}")
    e(f"v_mov_b32 v{vT+1}, 0")
    e("s_memtime s[100:101]"); g.wait_all(vm=False); e(f"s_sub_u32 s{sST+18}, s100, s{sST+18}")
    for i in range(20):
        e(f"v_mov_b32 v{vT}, s{sST+i}")
        e(f"buffer_store_dword v{vT}, v{vT+1}, {S4(SWS)}, s{sT0} offen offset:{4*i}")
stamps_out()
e("s_endpgm")

g.raw(".p2align 3")
g.label("L_dft")
g.restore(snap_role)
P = phase1(dft=True)
at = P["at"]
vC0, vC1 = 41, 42
def const_setup():
    srd(SW1, pCS, 8388608); srd(SWD, pSS, 8388608)
    e(f"v_lshrrev_b32 v{vT}, 3, v{vL}")
    e(f"s_and_b32 s{sT0}, s{sW}, 1")
    e(f"s_lshl_b32 s{sT0}, s{sT0}, 6")
    e(f"v_xor_b32 v{vT+1}, s{sT0}, v{vSW}")
    e(f"v_lshl_add_u32 v{vC0}, v{vT}, 18, v{vT+1}")
    e(f"v_lshl_add_u32 v{vC1}, v{vT}, 12, v{vT+1}")
at(9, 0, const_setup)
def extra_dft(c):
    if c != 7: return []
    def a(mat):
        e(f"s_and_b32 s{sT0}, s{sW}, 3"); e(f"s_lshl_b32 s{sT0}, s{sT0}, 21")
        e(f"s_lshr_b32 s{sT1}, s{sW}, 2"); e(f"s_lshl_b32 s{sT1}, s{sT1}, 17")
        e(f"s_add_u32 s{sT0}, s{sT0}, s{sT1}")
        e(f"s_lshl_b32 s{sT1}, s{sW}, 10")
        dma(sT1, STG + mat * 8192, vC0, SW1 if mat == 0 else SWD, f"s{sT0}")
    def b():
        e(f"s_cmp_ge_u32 s{sW}, 4")
        e(f"s_cselect_b32 s{SO}, s{pSS}, s{pCS}")
        e(f"s_cselect_b32 s{SO+1}, s{pSS+1}, s{pCS+1}")
        e(f"s_and_b32 s{SO+1}, s{SO+1}, 0xffff")
        e(f"s_mov_b32 s{SO+2}, 8388608"); e(f"s_mov_b32 s{SO+3}, 0x20000")
        e(f"s_and_b32 s{sT0}, s{sW}, 3"); e(f"s_lshl_b32 s{sT0}, s{sT0}, 15")
        e(f"s_lshl_b32 s{sT1}, s{sW}, 10")
        dma(sT1, GAM + STG, vC1, SO, f"s{sT0}")
    return [lambda: a(0), lambda: a(1), b]
RR, QQ = 160, 192
pend = run_loop(P, extra_dft)
stamp(4)
for f in pend: f()
cs_publish()
e(f"v_xor_b32 v{vT+1}, 256, v{vT}")
t = e(f"ds_read_b32 v{vCS1}, v{vT+1}")
stat_check()
e(f"s_lshl_b32 s{sT0}, s{sW}, 10")
e(f"s_add_u32 s{sT0}, s{sT0}, {MISC + 2048}")
e(f"v_add_u32 v{vT}, s{sT0}, v{vL4}")
for si in range(2):
    e(f"v_rcp_f32 v{vG+2*si+1}, v{vG+2*si+1}")
    e(f"v_mul_f32 v{vG+2*si}, v{vG+2*si}, v{vG+2*si+1}")
    e(f"ds_write_b32 v{vT}, v{vG+2*si+1} offset:{si*512}")
    e(f"ds_write_b32 v{vT}, v{vG+2*si} offset:{si*512+256}")
e(f"v_lshrrev_b32 v{vT+1}, 5, v{vL}")
e(f"v_lshl_add_u32 v{vT+1}, v{vT+1}, 5, s{sT0}")
for si in range(2):
    for q in range(4):
        off = si * 512 + (q >> 1) * 64 + (q & 1) * 16
        e(f"ds_read_b128 {vr(RR+si*16+q*4,4)}, v{vT+1} offset:{off}")
        t = e(f"ds_read_b128 {vr(QQ+si*16+q*4,4)}, v{vT+1} offset:{off+256}")
e(f"s_sub_u32 s{sT0}, s{sCB}, 14")
e(f"s_lshl_b32 s{sT0}, s{sT0}, 20")
e(f"s_add_u32 s{sT0}, s{sT0}, {Z_OFF}")
e(f"s_lshl_b32 s{sT1}, s{sRB}, 13")
e(f"s_add_u32 s{sT0}, s{sT0}, s{sT1}")
e(f"s_and_b32 s{sT1}, s{sW}, 1")
e(f"s_lshl_b32 s{sT1}, s{sT1}, 12")
e(f"s_add_u32 s{sT0}, s{sT0}, s{sT1}")
e(f"s_lshl_b32 s{sT1}, s{sW}, 17")
e(f"s_add_u32 s{sT2}, s{sT0}, s{sT1}")
e(f"s_xor_b32 s{sT1}, s{sT1}, 0x20000")
e(f"s_add_u32 s{sT3}, s{sT0}, s{sT1}")
g.wait(t)
TM = 224
for ui in range(2):
    for si in range(2):
        A = acc(ui, si)
        for j in range(16): e(f"v_mul_f32 v{TM+j}, v{vCS0+ui}, v{QQ+si*16+j}")
        for j in range(16): e(f"v_fma_f32 v{TM+j}, v{A+j}, v{RR+si*16+j}, -v{TM+j}")
        PK = 240 + ((ui * 2 + si) & 1) * 8
        for j in range(8): e(f"v_cvt_pk_bf16_f32 v{PK+j}, v{TM+2*j}, v{TM+2*j+1}")
        for q in range(2):
            e(f"buffer_store_dwordx4 {vr(PK+4*q,4)}, v{vL16}, {S4(SWS)}, s{sT2 if ui == 0 else sT3} offen offset:{si*2048+q*1024} sc1")
stamp(5)
g.wait_all(); e("s_barrier")
e(f"s_lshl_b32 s{sK0}, s{sRB}, 1")
e(f"s_add_u32 s{sK0}, s{sK0}, s{sCB}")
e(f"s_sub_u32 s{sK0}, s{sK0}, 14")
flag_store(0)
e(f"s_cmp_gt_u32 s{sK0}, 28")
e("s_cbranch_scc1 L_fft_done")
stamp(6)
C32, S32, N32 = 16, 24, 32
F64 = 40
TW = 88
ZF = 152
D1 = 184
vN, vP = 1, 5
FT = 248
vT_save = vT
vT = FT
a = x_read_addrs(perm=False)
e(f"v_add_u32 v{vN}, {STG}, v{a}")
for k in range(1, 4): e(f"v_xor_b32 v{vN+k}, {k << 5}, v{vN}")
a = x_read_addrs(perm=True)
e(f"v_mov_b32 v{11}, v{vT+1}")
e(f"v_add_u32 v{vP}, {STG}, v{a}")
for k in range(1, 4): e(f"v_xor_b32 v{vP+k}, {k << 5}, v{vP}")
vEXP, vPOLL, vPA = 9, 10, 15
dft_flag_addr(vT, 0)
poll_setup(vT, 32)
for q in range(2):
    e(f"ds_read_b128 {vr(C32+4*q,4)}, v{vN+q} offset:0")
    e(f"ds_read_b128 {vr(S32+4*q,4)}, v{vN+q} offset:8192")
def f64(mat, p, kap):
    if p == 1 and kap >= 2: return (C32 if mat == 0 else S32) + 4 * (kap - 2)
    return F64 + (mat * 6 + p * 4 + kap) * 4
def f64_read(mat, p, kap):
    return e(f"ds_read_b128 {vr(f64(mat,p,kap),4)}, v{vP+kap} offset:{mat*8192 + p*4096}")
for mat in range(2):
    for p in range(2):
        for kap in range(4):
            if not (p == 1 and kap >= 2): f64_read(mat, p, kap)
for mat in range(2):
    for kap in range(4):
        e(f"ds_read_b128 {vr(D1+mat*16+kap*4,4)}, v{vN+kap} offset:{GAM + mat*4096}")
g.wait_all(vm=False)
for j in range(8): e(f"v_xor_b32 v{N32+j}, 0x80008000, v{S32+j}")
for mat in range(2):
    for j in range(16):
        e(f"v_lshlrev_b32 v{TW+mat*32+2*j}, 16, v{D1+mat*16+j}")
        e(f"v_and_b32 v{TW+mat*32+2*j+1}, 0xffff0000, v{D1+mat*16+j}")
ZL = 98304
vZ0, vZ1 = 12, 11
e(f"v_bfe_u32 v{vT}, v{vL}, 5, 1")
e(f"v_bfe_u32 v{vT+1}, v{vL}, 3, 2")
e(f"v_lshl_add_u32 v{vT}, v{vT}, 3, v{vT+1}")
e(f"v_lshl_add_u32 v{vZ0}, v{vT}, 11, v{vSW}")
e(f"v_xor_b32 v{vZ1}, 64, v{vZ0}")
e(f"v_add_u32 v{vZ1}, {4*2048}, v{vZ1}")
e(f"s_lshr_b32 s{sT0}, s{sW}, 2"); e(f"s_lshl_b32 s{sT0}, s{sT0}, 20")
e(f"s_bfe_u32 s{sT1}, s{sW}, 0x10001"); e(f"s_lshl_b32 s{sT1}, s{sT1}, 16")
e(f"s_add_u32 s{sT0}, s{sT0}, s{sT1}")
e(f"s_and_b32 s{sT1}, s{sW}, 1"); e(f"s_lshl_b32 s{sT1}, s{sT1}, 10")
e(f"s_add_u32 s{sT0}, s{sT0}, s{sT1}")
e(f"s_lshr_b32 s{sT1}, s{sK0}, 2"); e(f"s_lshl_b32 s{sT1}, s{sT1}, 17")
e(f"s_add_u32 s{sT0}, s{sT0}, s{sT1}")
e(f"s_and_b32 s{sT1}, s{sK0}, 3"); e(f"s_lshl_b32 s{sT1}, s{sT1}, 7")
e(f"s_add_u32 s{sT0}, s{sT0}, s{sT1}")
e(f"s_add_u32 s{sT2}, s{sT0}, {Z_OFF}")
e(f"s_add_u32 s{sT3}, s{sT2}, {16*2048}")
e(f"s_lshl_b32 s{sMW}, s{sW}, 13")
vZR = 13
e(f"v_and_b32 v{vT}, 31, v{vL}")
e(f"v_bfe_u32 v{vT+1}, v{vT}, 1, 3")
e(f"v_xor_b32 v{vT+1}, s{sW}, v{vT+1}")
e(f"v_lshlrev_b32 v{vT+1}, 4, v{vT+1}")
e(f"v_lshl_or_b32 v{vT+1}, v{vT}, 7, v{vT+1}")
e(f"v_lshrrev_b32 v{vT}, 5, v{vL}")
e(f"v_lshl_or_b32 v{vT+1}, v{vT}, 12, v{vT+1}")
e(f"v_add_u32 v{vZR}, {ZL}, v{vT+1}")
poll_check(poll_issue())
e("s_barrier")
stamp(7)
for hf in range(2):
    for b in range(4):
        dma(sMW, ZL + hf * 4096 + b * 1024, vZ0 if (b & 1) == 0 else vZ1, SWS, f"s{sT2 if b < 2 else sT3}", ioff=hf * 512, sc1=True)
g.wait_all(); e("s_barrier")
stamp(8)
def zf(part, tau, q): return ZF + ((part * 2 + tau) * 2 + q) * 4
tz = {}
for tau in range(2):
    for part in range(2):
        for q in range(2):
            tz[tau] = e(f"ds_read_b128 {vr(zf(part,tau,q),4)}, v{vZR} offset:{((part*2+tau)*2+q)*8192}")
def d1(ri, tau): return D1 + (ri * 2 + tau) * 16
def mf(D, A, B, first): e(f"v_mfma_f32_32x32x16_bf16 {vr(D,16)}, {vr(A,4)}, {vr(B,4)}, " + ("0" if first else vr(D, 16)))
for tau in range(2):
    g.wait(tz[tau])
    for q in range(2):
        mf(d1(0, tau), zf(0, tau, q), C32 + 4 * q, q == 0)
        mf(d1(1, tau), zf(0, tau, q), S32 + 4 * q, q == 0)
    for q in range(2):
        mf(d1(0, tau), zf(1, tau, q), N32 + 4 * q, False)
        mf(d1(1, tau), zf(1, tau, q), C32 + 4 * q, False)
e("s_nop 7")
for mat in range(2):
    for kap in (2, 3): tl = f64_read(mat, 1, kap)
for tau in range(2):
    for j2 in range(8):
        for h in range(2):
            j = 2 * j2 + h
            Dr, Di, Tr, Ti = d1(0, tau) + j, d1(1, tau) + j, TW + tau * 16 + j, TW + 32 + tau * 16 + j
            e(f"v_mul_f32 v{FT+h}, v{Di}, v{Ti}")
            e(f"v_mul_f32 v{FT+2+h}, v{Di}, v{Tr}")
            e(f"v_fma_f32 v{FT+h}, v{Dr}, v{Tr}, -v{FT+h}")
            e(f"v_fma_f32 v{FT+2+h}, -v{Dr}, v{Ti}, -v{FT+2+h}")
        e(f"v_cvt_pk_bf16_f32 v{ZF+tau*8+j2}, v{FT}, v{FT+1}")
        e(f"v_cvt_pk_bf16_f32 v{ZF+16+tau*8+j2}, v{FT+2}, v{FT+3}")
g.wait(tl)
for kap in range(4):
    for p in range(2):
        mf(D1 + p * 16, f64(0, p, kap), ZF + 4 * kap, kap == 0)
    for p in range(2):
        mf(D1 + p * 16, f64(1, p, kap), ZF + 16 + 4 * kap, False)
e(f"s_lshl_b32 s{sT0}, s{sK0}, 3")
e(f"s_add_u32 s{sT0}, s{sT0}, s{sW}")
e(f"s_lshl_b32 s{sT0}, s{sT0}, 12")
e(f"s_add_u32 s{sT2}, s{sT0}, {Y_OFF}")
for p in range(2):
    for j in range(8): e(f"v_cvt_pk_bf16_f32 v{TW+p*8+j}, v{D1+p*16+2*j}, v{D1+p*16+2*j+1}")
    for q in range(2):
        e(f"buffer_store_dwordx4 {vr(TW+p*8+4*q,4)}, v{vL16}, {S4(SWS)}, s{sT2} offen offset:{(p*2+q)*1024} sc1")
stamp(9)
g.wait_all(); e("s_barrier")
g.label("L_fft_done")
vT = vT_save
flag_store(1)
stamps_out()
g.label("L_end")
e("s_endpgm")
g.raw(f""".section .rodata,"a"
.p2align 6
.amdhsa_kernel {KN}
  .amdhsa_next_free_vgpr 256
  .amdhsa_next_free_sgpr 102
  .amdhsa_accum_offset 256
  .amdhsa_group_segment_fixed_size 0
  .amdhsa_kernarg_size 96
  .amdhsa_user_sgpr_count 2
  .amdhsa_user_sgpr_kernarg_segment_ptr 1
  .amdhsa_system_sgpr_workgroup_id_x 1
.end_amdhsa_kernel""")
open(OUT, "w").write("\n".join(g.out) + "\n")
print("lines", len(g.out), "nops", g.nops)
```

```python
import sys, struct
from asmgen import *

OPT = set(a[2:] for a in sys.argv if a.startswith("--"))
STAMPS = "stamps" in OPT
OUT = [a for a in sys.argv[1:] if not a.startswith("--")]
OUT = OUT[0] if OUT else "k.s"
KN = "recurrent_scan__spectral_fnet__geglu_ffn__prompt_kernel"
def fhex(f): return hex(struct.unpack("<I", struct.pack("<f", f))[0])

H_OFF = 0
W_OFF = 0x700000
XST = 0x900000
FL_OFF = 0x908000
CP_OFF = 0x910000
TS_OFF = 0x990000
WS_SIZE = 0x9D0000 if STAMPS else 0x990000
GAM, STG, XB, MISC, LATE = 49152, 16384, 98304, 147456, 131072
BIG = 0x7F000000

g = Gen()
_rec = [None]
def e(text):
    if _rec[0] is not None:
        _rec[0].append(text); return None
    return g.e(text)
def rec(*fns):
    _rec[0] = L = []
    for f in fns: f()
    _rec[0] = None
    groups = []
    for t in L:
        if groups and t.startswith("s_cselect"): groups[-1].append(t)
        else: groups.append([t])
    return [(lambda gr=gr: [g.e(t) for t in gr]) for gr in groups]

sW, sRB, sCB, sT0, sT1, sXO, sWK, sF1, sMW, sMX, sT2, sT3, sT4 = 3, 4, 5, 6, 7, 8, 9, 10, 11, 12, 13, 14, 15
pX, pCS, pSS, pCD, pSD, pWG, pWU, pWD, pOUT, pDBG, pWS = 16, 18, 20, 22, 24, 28, 30, 32, 34, 36, 38
SX, SW0, SW1, SWD, SWS, SO, SD = 40, 44, 48, 52, 56, 60, 64
sPC = 68
sR2, sC2, sFLAG, sK0, sK1, sSPIN, sHO, sSD, sNON, sCH = 70, 71, 72, 73, 74, 75, 76, 77, 78, 79
sD0, sD1, sD2, sD3, sHS0, sHS1, sPF = 18, 19, 20, 21, 22, 23, 24
sG0, sG1 = 26, 27
sDT, sMIR = 68, 69
sST = 80
def stamp(i):
    if not STAMPS: return
    e(("s_memtime" if ("cyc" in OPT and i not in (0, 10)) else "s_memrealtime") + " s[100:101]")
    g.wait_all(vm=False); e(f"s_mov_b32 s{sST+i}, s100")
def S4(b): return sr(b, 4)
def srd(b, p, size):
    e(f"s_mov_b32 s{b}, s{p}"); e(f"s_and_b32 s{b+1}, s{p+1}, 0xffff")
    e(f"s_mov_b32 s{b+2}, {size}"); e(f"s_mov_b32 s{b+3}, 0x20000")
def srd_sel(b, p1, p0, size):
    e(f"s_cselect_b32 s{b}, s{p1}, s{p0}"); e(f"s_cselect_b32 s{b+1}, s{p1+1}, s{p0+1}")
    e(f"s_and_b32 s{b+1}, s{b+1}, 0xffff")
    e(f"s_mov_b32 s{b+2}, {size}"); e(f"s_mov_b32 s{b+3}, 0x20000")
def pr(r): return f"v[{r}:{r+1}]"

vL, vXD0, vXD1, vWD0, vWD1 = 0, 1, 2, 3, 4
vXR, vWR, vSW, vL16, vROW = 5, 9, 13, 14, 15
vEXP, vPOLL, vCS, vPA = 16, 17, 18, 19
vT = 20
SR = 32
vWR1 = 36
vDD0, vDD1 = 40, 41
vGA, vCA, vG = 42, 43, 44
vK0, vK1, vS2 = 48, 50, 52
vAC, vSTO, vGL, vZ, vFL, vDUM = 54, 56, 60, 61, 62, 63
ACC, XF, WF = 64, 128, 144
CPR, vBM = 160, 176
def acc(ui, si): return ACC + (ui * 2 + si) * 16
def xf(s, si): return XF + s * 8 + si * 4
def wf(s, ui): return WF + s * 8 + ui * 4
SNAKE = [(0, 0), (1, 0), (1, 1), (0, 1)]
tk = {}

spin_id = [0]
def spin(tok, loads, test, sleep=1):
    n = spin_id[0]; spin_id[0] += 1
    g.wait(tok)
    test()
    e(f"s_cbranch_vccz L_ok{n}")
    snap = g.snapshot()
    e(f"s_mov_b32 s{sSPIN}, 0x10000")
    g.label(f"L_spin{n}")
    e(f"s_sleep {sleep}")
    loads()
    e("s_waitcnt vmcnt(0)")
    test()
    e(f"s_cbranch_vccz L_ok{n}")
    e(f"s_sub_u32 s{sSPIN}, s{sSPIN}, 1")
    e(f"s_cmp_lg_u32 s{sSPIN}, 0")
    e(f"s_cbranch_scc1 L_spin{n}")
    g.label(f"L_ok{n}")
    g.restore(snap)
def poll_issue():
    return e(f"buffer_load_dword v{vPOLL}, v{vPA}, {S4(SWS)}, 0 offen sc1")
def poll_check(tok):
    spin(tok, poll_issue, lambda: e(f"v_cmp_ne_u32 vcc, v{vPOLL}, v{vEXP}"))
def poll_setup(vaddr, nlanes):
    e(f"s_cmp_eq_u32 s{sW}, 0")
    e(f"s_cselect_b32 s{sT0}, {nlanes}, 0")
    e(f"v_mov_b32 v{vPA}, {BIG}")
    e(f"v_mov_b32 v{vEXP}, s{sNON}")
    e(f"v_cmp_gt_u32 vcc, s{sT0}, v{vL}")
    e(f"v_cndmask_b32 v{vPA}, v{vPA}, v{vaddr}, vcc")
    e(f"v_cndmask_b32 v{vEXP}, 0, v{vEXP}, vcc")
def flag_store():
    return e(f"buffer_store_dword v{vSTO+1}, v{vFL}, {S4(SWS)}, s{sFLAG} offen sc1")
def bf16r(d, s):
    e(f"v_cvt_pk_bf16_f32 v{d}, v{s}, v{s}"); e(f"v_lshlrev_b32 v{d}, 16, v{d}")
def dma(m0s, m0imm, voff, srdb, soff, ioff=0, sc1=False, both=False):
    e(f"s_add_u32 m0, s{m0s}, {m0imm - (0 if both else ioff)}")
    return e(f"buffer_load_dwordx4 v{voff}, {S4(srdb)}, {soff} offen" + (f" offset:{ioff}" if ioff else "") + (" sc1" if sc1 else "") + " lds")
def mf(D, A, B, first): e(f"v_mfma_f32_32x32x16_bf16 {vr(D,16)}, {vr(A,4)}, {vr(B,4)}, " + ("0" if first else vr(D, 16)))
def tr(dst, a, off, step=512):
    e(f"ds_read_b64_tr_b16 {vr(dst,2)}, v{a} offset:{off}")
    return e(f"ds_read_b64_tr_b16 {vr(dst+2,2)}, v{a} offset:{off+step}")

hdr = open("recurrent_scan__spectral_fnet__geglu_ffn__prompt.s.ref").read().split("\n")
for l in hdr:
    if l.startswith(";") and "@launch" not in l: g.raw(l)
g.raw("; @launch grid=(256,1,1) block=(512,1,1) lds=163840")
g.raw(open("header.txt").read().rstrip())
if STAMPS: g.raw("; opts " + " ".join(sorted(OPT)))
g.raw('.amdgcn_target "amdgcn-amd-amdhsa--gfx950"\n.text')
g.raw(f".globl {KN}\n.p2align 8\n.type {KN},@function\n{KN}:")
e("s_cmp_ge_u32 s2, 0x100")
e("s_cbranch_scc1 L_end")
e("s_load_dwordx16 s[16:31], s[0:1], 0")
e("s_load_dwordx8 s[32:39], s[0:1], 64")
e(f"s_memrealtime s[{sK1}:{sK1+1}]")
e(f"s_getpc_b64 s[{sPC}:{sPC+1}]")
g.label("L_pc")
e(f"v_lshlrev_b32 v{vT}, 7, v0")
e(f"v_min_u32 v{vT}, L_end-L_pc, v{vT}")
e(f"global_load_dword v{vDUM}, v{vT}, s[{sPC}:{sPC+1}]")
e(f"v_lshrrev_b32 v{vT+2}, 6, v0")
e(f"v_and_b32 v{vL}, 63, v0")
e(f"v_readfirstlane_b32 s{sW}, v{vT+2}")
if STAMPS:
    e("s_memrealtime s[100:101]"); g.wait_all(vm=False); e(f"s_mov_b32 s{sST}, s100")
    e("s_memtime s[100:101]"); g.wait_all(vm=False); e(f"s_mov_b32 s{sST+18}, s100")
e(f"s_lshr_b32 s{sT1}, s2, 3")
e(f"s_bfe_u32 s{sT3}, s2, 0x20001")
e(f"s_mul_i32 s{sT4}, s{sT3}, 28")
e(f"s_add_u32 s{sT4}, s{sT4}, s{sT1}")
e(f"s_lshr_b32 s{sCB}, s{sT4}, 3")
e(f"s_and_b32 s{sRB}, s{sT4}, 7")
e(f"s_and_b32 s{sT0}, s{sT3}, 1")
e(f"s_add_u32 s{sT0}, s{sT0}, 14")
e(f"s_and_b32 s{sT4}, s2, 4")
e(f"s_add_u32 s{sT4}, s{sT4}, s{sT1}")
e(f"s_sub_u32 s{sT4}, s{sT4}, 28")
e(f"s_cmp_ge_u32 s{sT1}, 28")
e(f"s_cselect_b32 s{sCB}, s{sT0}, s{sCB}")
e(f"s_cselect_b32 s{sRB}, s{sT4}, s{sRB}")
e(f"s_lshl_b32 s{sCH}, s{sRB}, 2")
e(f"s_lshr_b32 s{sCH}, 0x03625140, s{sCH}")
e(f"s_and_b32 s{sCH}, s{sCH}, 15")
e(f"s_and_b32 s{sT2}, s2, 1")
e(f"s_lshl_b32 s{sT2}, s{sT2}, 3")
e(f"s_add_u32 s{sRB}, s{sRB}, s{sT2}")
e(f"v_lshrrev_b32 v{vT+2}, 3, v{vL}")
e(f"v_lshrrev_b32 v{vT+3}, 4, v{vL}")
e(f"v_and_b32 v{vT+4}, 7, v{vL}")
e(f"v_xor_b32 v{vT+4}, v{vT+4}, v{vT+3}")
e(f"v_lshlrev_b32 v{vSW}, 4, v{vT+4}")
e(f"v_mul_u32_u24 v{vXD0}, 57344, v{vT+2}")
e(f"v_add_u32 v{vXD0}, v{vXD0}, v{vSW}")
e(f"v_xor_b32 v{vXD1}, 64, v{vXD0}")
e(f"v_add_u32 v{vXD1}, {8*57344}, v{vXD1}")
e(f"s_lshr_b32 s{sT0}, s{sW}, 1")
e(f"s_lshl_b32 s{sXO}, s{sRB}, 2")
e(f"s_add_u32 s{sXO}, s{sXO}, s{sT0}")
e(f"s_mul_i32 s{sXO}, s{sXO}, 896")
e(f"s_and_b32 s{sT0}, s{sW}, 1")
e(f"s_mul_i32 s{sT0}, s{sT0}, {16*57344}")
e(f"s_add_u32 s{sXO}, s{sXO}, s{sT0}")
e(f"s_lshl_b32 s{sT0}, s{sCH}, 7")
e(f"s_add_u32 s{sXO}, s{sXO}, s{sT0}")
e(f"s_lshl_b32 s{sMX}, s{sW}, 11")
e(f"v_lshlrev_b32 v{vL16}, 4, v{vL}")
e(f"s_lshl_b32 s{sHO}, s{sCB}, 3")
e(f"s_add_u32 s{sHO}, s{sHO}, s{sW}")
e(f"s_and_b32 s{sT2}, s{sHO}, 31")
e(f"s_lshl_b32 s{sT2}, s{sT2}, 6")
e(f"s_lshr_b32 s{sT3}, s{sHO}, 5")
e(f"s_add_u32 s{sT2}, s{sT2}, s{sT3}")
e(f"s_lshl_b32 s{sT3}, s{sRB}, 2")
e(f"s_add_u32 s{sT2}, s{sT2}, s{sT3}")
e(f"s_mul_i32 s{sT2}, s{sT2}, 896")
e(f"v_mov_b32 v{vT+5}, {BIG}")
e(f"v_cmp_gt_u32 vcc, 56, v{vL}")
e(f"v_cndmask_b32 v{vT+5}, v{vT+5}, v{vL16}, vcc")
g.wait_all(vm=False)
srd(SX, pX, 1835008)
tk["row"] = e(f"buffer_load_dwordx4 {vr(SR,4)}, v{vT+5}, {S4(SX)}, s{sT2} offen")
def issue_x(c, b):
    return dma(sMX, XB + (c % 3) * STG + b * 1024, vXD0 + b, SX, f"s{sXO}")
issue_x(0, 0); issue_x(0, 1)
e(f"s_cmp_ge_u32 s{sCB}, 14")
e("s_cbranch_scc1 L_dft")
snap_role = g.snapshot()

def tag_race():
    srd(SD, pDBG, 256)
    e(f"s_or_b32 s{sK1}, s{sK1}, 1")
    e(f"s_lshr_b32 s{sT0}, s2, 3")
    e(f"s_or_b32 s{sT0}, s{sT0}, s{sW}")
    e(f"s_lshl_b32 s{sT0}, s{sT0}, 12")
    e(f"v_mov_b32 v60, s{sK1}"); e(f"v_mov_b32 v{vZ}, 0")
    e(f"v_lshlrev_b32 v{vFL}, 24, v{vL}")
    e(f"buffer_atomic_cmpswap v[60:61], v{vFL}, {S4(SD)}, s{sT0} offen sc1")
def common_setup(vCL, statlds):
    srd(SWS, pWS, WS_SIZE)
    e(f"s_lshl_b32 s{sT3}, s{sRB}, 7")
    e(f"s_add_u32 s{sHO}, s{sHO}, s{sT3}")
    e(f"s_lshl_b32 s{sHO}, s{sHO}, 3")
    e(f"s_add_u32 s{sHO}, s{sHO}, {XST}")
    e(f"s_lshl_b32 s{sFLAG}, s{sCB}, 4")
    e(f"s_add_u32 s{sFLAG}, s{sFLAG}, s{sRB}")
    e(f"s_lshl_b32 s{sK0}, s{sFLAG}, 3")
    e(f"s_add_u32 s{sK0}, s{sK0}, s{sW}")
    e(f"s_lshl_b32 s{sK0}, s{sK0}, 8")
    e(f"s_add_u32 s{sK0}, s{sK0}, {CP_OFF}")
    e(f"s_and_b32 s{sT0}, s{sFLAG}, 0xf8")
    e(f"s_lshl_b32 s{sT1}, s{sT0}, 11")
    e(f"s_add_u32 s{sT1}, s{sT1}, {CP_OFF}")
    e(f"s_add_u32 s{sSD}, s{sT1}, s{sMX}")
    e(f"s_lshl_b32 s{sT2}, s{sRB}, 10")
    e(f"s_add_u32 s{sT2}, s{sT2}, {XST}")
    e(f"s_cmp_eq_u32 s{sW}, 7")
    e(f"s_cselect_b32 s{sSD}, s{sT2}, s{sSD}")
    e(f"v_lshrrev_b32 v{vT}, 5, v{vL}")
    e(f"v_xor_b32 v{vT}, s{sW}, v{vT}")
    e(f"v_and_b32 v{vT+1}, 31, v{vL}")
    e(f"v_lshlrev_b32 v{vT+1}, 3, v{vT+1}")
    e(f"v_lshl_add_u32 v{vT}, v{vT}, 8, v{vT+1}")
    e(f"v_add_u32 v{vCA}, s{sT1}, v{vT}")
    e(f"v_add_u32 v{vCL}, {statlds}, v{vT}")
    e(f"s_and_b32 s{sT0}, s{sW}, 1")
    e(f"s_lshl_b32 s{sT0}, s{sT0}, 9")
    e(f"v_lshl_add_u32 v{vT}, v{vROW}, 3, s{sT0}")
    e(f"v_add_u32 v{vGA}, s{sT2}, v{vT}")
    e(f"v_add_u32 v{vGL}, {statlds + 7*2048}, v{vT}")
    e(f"s_lshl_b32 s{sFLAG}, s{sRB}, 4")
    e(f"s_add_u32 s{sFLAG}, s{sFLAG}, s{sCB}")
    e(f"s_lshl_b32 s{sFLAG}, s{sFLAG}, 7")
    e(f"s_add_u32 s{sFLAG}, s{sFLAG}, {FL_OFF}")
    e(f"s_cmp_lg_u32 s{sW}, 0")
    e(f"s_cselect_b32 s{sFLAG}, {BIG}, s{sFLAG}")
def tag_issue():
    return e(f"buffer_load_dword v{vSTO+1}, v{vZ}, {S4(SD)}, 0 offen sc1")
def stat_row():
    a, q, t = vT, vT + 1, vT + 2
    g.wait(tk["row"])
    e(f"v_mov_b32 v{a}, 0"); e(f"v_mov_b32 v{q}, 0")
    for i in range(4):
        e(f"v_dot2c_f32_bf16 v{a}, s{sK1}, v{SR+i}")
        e(f"v_dot2c_f32_bf16 v{q}, v{SR+i}, v{SR+i}")
    e(f"v_permlane32_swap_b32 v{a}, v{q}")
    e(f"v_add_f32 v{a}, v{a}, v{q}")
    e(f"v_mov_b32 v{t}, v{a}")
    e(f"v_permlane16_swap_b32 v{a}, v{t}")
    e(f"v_add_f32 v{a}, v{a}, v{t}")
    for sh in (8, 4, 2, 1):
        e(f"v_add_f32_dpp v{a}, v{a}, v{a} row_ror:{sh} row_mask:0xf bank_mask:0xf")
    e(f"v_mul_f32 v{a}, {fhex(1/448)}, v{a}")
    e(f"v_mov_b32 v{q}, v{a}")
    e(f"v_permlane32_swap_b32 v{a}, v{q}")
    e(f"v_fma_f32 v{q}, -v{a}, v{a}, v{q}")
    e(f"v_max_f32 v{q}, 0, v{q}")
    bf16r(q, q)
    e(f"v_add_f32 v{q}, {fhex(1e-5)}, v{q}")
    bf16r(q, q)
    e(f"v_sqrt_f32 v{q}, v{q}")
    e(f"v_cvt_pk_bf16_f32 v{vSTO}, v{a}, v{q}")
def tag_check():
    spin(tk["tag"], tag_issue, lambda: e(f"v_cmp_eq_u32 vcc, 0, v{vSTO+1}"), sleep=2)
def stat_store():
    e(f"v_readfirstlane_b32 s{sNON}, v{vSTO+1}")
    e(f"buffer_store_dwordx2 {pr(vSTO)}, v{vFL}, {S4(SWS)}, s{sHO} offen sc1")
    e(f"v_mov_b32 v{vSTO+2}, v{vCS}")
    e(f"v_mov_b32 v{vSTO+3}, v{vSTO+1}")
    e(f"v_and_b32 v{vT}, 31, v{vL}")
    e(f"v_permlane32_swap_b32 v{vCS}, v{vSTO+2}")
    e(f"v_lshlrev_b32 v{vT}, 3, v{vT}")
    e(f"v_add_f32 v{vSTO+2}, v{vCS}, v{vSTO+2}")
    e(f"buffer_store_dwordx2 {pr(vSTO+2)}, v{vT}, {S4(SWS)}, s{sK0} offen sc1")
def stat_loads():
    e(f"buffer_load_dwordx2 {pr(vG)}, v{vGA}, {S4(SWS)}, 0 offen sc1")
    e(f"buffer_load_dwordx2 {pr(vG+2)}, v{vGA}, {S4(SWS)}, 0 offen offset:256 sc1")
    e(f"s_mov_b32 s{sT0}, 0")
    for i in range(7):
        e(f"buffer_load_dwordx2 {pr(CPR+2*i)}, v{vCA}, {S4(SWS)}, s{sT0} offen sc1")
        e(f"s_add_u32 s{sT0}, s{sT0}, 2048")
TAGS = [vG + 1, vG + 3] + [CPR + 2 * i + 1 for i in range(7)]
def tag_reduce():
    e(f"v_min3_u32 v{vT}, v{TAGS[0]}, v{TAGS[1]}, v{TAGS[2]}"); e(f"v_max3_u32 v{vT+1}, v{TAGS[0]}, v{TAGS[1]}, v{TAGS[2]}")
    for i in (3, 5, 7):
        e(f"v_min3_u32 v{vT}, v{vT}, v{TAGS[i]}, v{TAGS[i+1]}"); e(f"v_max3_u32 v{vT+1}, v{vT+1}, v{TAGS[i]}, v{TAGS[i+1]}")
    e(f"v_xor_b32 v{vT}, s{sNON}, v{vT}"); e(f"v_xor_b32 v{vT+1}, s{sNON}, v{vT+1}")
    e(f"v_or_b32 v{vT}, v{vT}, v{vT+1}")
def stat_check():
    first = [True]
    def test():
        if not first[0]: tag_reduce()
        first[0] = False
        e(f"v_cmp_ne_u32 vcc, 0, v{vT}")
    spin(None, stat_loads, test)
def stat_prep():
    c = CPR
    for i in range(1, 7): e(f"v_add_f32 v{c}, v{c}, v{CPR+2*i}")
    e(f"v_and_b32 v{vT}, 0xffff0000, v{c}")
    e(f"v_sub_f32 v{vT+1}, v{c}, v{vT}")
    e(f"v_and_b32 v{vT+2}, 0xffff0000, v{vT+1}")
    e(f"v_sub_f32 v{vT+1}, v{vT+1}, v{vT+2}")
    e(f"v_lshrrev_b32 v{vT}, 16, v{vT}")
    e(f"v_or_b32 v{vAC}, v{vT}, v{vT+2}")
    e(f"v_lshrrev_b32 v{vAC+1}, 16, v{vT+1}")
    e(f"v_cmp_gt_u32 vcc, 32, v{vL}")
    for si in range(2):
        e(f"v_and_b32 v{vT}, 0xffff, v{vG+2*si}")
        e(f"v_xor_b32 v{vT}, 0x8000, v{vT}")
        e(f"v_lshl_or_b32 v{vT+1}, v{vT}, 16, v{vT}")
        e(f"v_cndmask_b32 v{vBM+2*si}, 0, v{vT+1}, vcc")
        e(f"v_cndmask_b32 v{vBM+2*si+1}, 0, v{vT}, vcc")
        e(f"v_cndmask_b32 v{vBM+4+2*si}, v{vT+1}, v{vZ}, vcc")
        e(f"v_cndmask_b32 v{vBM+4+2*si+1}, v{vT}, v{vZ}, vcc")
        e(f"v_and_b32 v{vG+2*si+1}, 0xffff0000, v{vG+2*si}")

def tile_addr(perm):
    hf = vT + 2
    if perm:
        e(f"v_and_b32 v{vROW}, 19, v{vL}")
        e(f"v_bfe_u32 v{hf}, v{vL}, 2, 1"); e(f"v_lshl_or_b32 v{vROW}, v{hf}, 3, v{vROW}")
        e(f"v_bfe_u32 v{hf}, v{vL}, 3, 1"); e(f"v_lshl_or_b32 v{vROW}, v{hf}, 2, v{vROW}")
    else:
        e(f"v_and_b32 v{vROW}, 31, v{vL}")
    e(f"v_lshrrev_b32 v{hf}, 5, v{vL}")
    e(f"v_bfe_u32 v{vT+3}, v{vROW}, 1, 3")
    e(f"v_xor_b32 v{vT+3}, v{vT+3}, v{hf}")
    e(f"v_lshlrev_b32 v{vT+3}, 4, v{vT+3}")
    e(f"v_lshl_or_b32 v{vT+3}, v{vROW}, 7, v{vT+3}")
    return vT + 3

def phase1(dft, vCL, statlds, early_vm, idle_setup, side_mid, side_end, extra_chunk):
    def advance(regs):
        e(f"s_add_u32 s{sCH}, s{sCH}, 1")
        e(f"s_cmp_eq_u32 s{sCH}, 7")
        e(f"s_cselect_b32 s{sT4}, -6, 1")
        for r, step in regs:
            e(f"s_mul_i32 s{sT3}, s{sT4}, {step}")
            e(f"s_add_u32 s{r}, s{r}, s{sT3}")
    e(f"s_bitcmp1_b32 s{sW}, 0")
    if not dft:
        srd_sel(SW0, pWU, pWG, 1605632)
        e(f"v_mul_u32_u24 v{vWD0}, 3584, v{vT+2}")
        e(f"v_bfe_u32 v{vT+1}, v{vL}, 1, 2")
        e(f"v_bfe_u32 v{vT}, v{vL}, 4, 1")
        e(f"v_xor_b32 v{vT+1}, v{vT+1}, v{vT}")
        e(f"v_lshl_add_u32 v{vWD0}, v{vT+1}, 5, v{vWD0}")
        e(f"v_and_b32 v{vT+1}, 1, v{vL}")
        e(f"v_lshl_add_u32 v{vWD0}, v{vT+1}, 4, v{vWD0}")
        e(f"s_and_b32 s{sT0}, s{sW}, 1")
        e(f"s_lshl_b32 s{sT1}, s{sT0}, 6")
        e(f"v_xor_b32 v{vWD0}, s{sT1}, v{vWD0}")
        e(f"v_add_u32 v{vWD1}, {16*3584}, v{vWD0}")
        e(f"s_lshl_b32 s{sMW}, s{sT0}, 10")
        e(f"s_lshr_b32 s{sT0}, s{sW}, 2")
        e(f"s_mul_i32 s{sWK}, s{sT0}, {8*3584}")
        e(f"s_lshl_b32 s{sT0}, s{sT0}, 11")
        e(f"s_add_u32 s{sMW}, s{sMW}, s{sT0}")
        e(f"s_bfe_u32 s{sT0}, s{sW}, 0x10001")
        e(f"s_mul_i32 s{sT1}, s{sT0}, {GAM}")
        e(f"s_add_u32 s{sMW}, s{sMW}, s{sT1}")
        e(f"s_lshl_b32 s{sT0}, s{sT0}, 7")
        e(f"s_add_u32 s{sWK}, s{sWK}, s{sT0}")
        e(f"s_lshl_b32 s{sT0}, s{sCB}, 8")
        e(f"s_add_u32 s{sWK}, s{sWK}, s{sT0}")
        e(f"s_mul_i32 s{sT0}, s{sCH}, {64*3584}")
        e(f"s_add_u32 s{sWK}, s{sWK}, s{sT0}")
        e(f"s_add_u32 s{sF1}, s{sWK}, {32*3584}")
        wstep, lstep = 64 * 3584, 4096
    else:
        srd_sel(SW0, pSD, pCD, 401408)
        e(f"v_mul_u32_u24 v{vWD0}, 896, v{vT+2}")
        e(f"v_add_u32 v{vWD0}, v{vWD0}, v{vSW}")
        e(f"v_xor_b32 v{vWD1}, 64, v{vWD0}")
        e(f"v_add_u32 v{vWD1}, {8*896}, v{vWD1}")
        e(f"s_sub_u32 s{sT0}, s{sCB}, 14")
        e(f"s_lshl_b32 s{sT0}, s{sT0}, 2")
        e(f"s_lshr_b32 s{sT1}, s{sW}, 1")
        e(f"s_add_u32 s{sT0}, s{sT0}, s{sT1}")
        e(f"s_mul_i32 s{sWK}, s{sT0}, {32*896}")
        e(f"s_lshl_b32 s{sT0}, s{sCH}, 7")
        e(f"s_add_u32 s{sWK}, s{sWK}, s{sT0}")
        e(f"s_add_u32 s{sF1}, s{sWK}, {16*896}")
        e(f"s_lshr_b32 s{sT0}, s{sW}, 2")
        e(f"s_mul_i32 s{sMW}, s{sT0}, {GAM}")
        e(f"s_and_b32 s{sT0}, s{sW}, 3")
        e(f"s_lshl_b32 s{sT0}, s{sT0}, 12")
        e(f"s_add_u32 s{sMW}, s{sMW}, s{sT0}")
        wstep, lstep = 128, 1024
    def issue_w(c, i):
        t = dma(sMW, (c % 3) * STG + i * lstep, vWD0 + (i & 1), SW0, f"s{sWK if i < 2 else sF1}")
        if i == 3 and c < 6: advance([(sXO, 128), (sWK, wstep), (sF1, wstep)])
        return t
    ctok = {}
    first = [issue_w(0, i) for i in range(4)]
    def chunk_ops(c):
        def lastw(): ctok[c] = issue_w(c, 3)
        return [lambda b=b: issue_x(c, b) for b in range(2)] + [lambda i=i: issue_w(c, i) for i in range(3)] + [lastw]
    tag_race()
    early_vm()
    a0 = tile_addr(perm=dft)
    e(f"s_and_b32 s{sT0}, s{sW}, 1")
    e(f"s_lshl_b32 s{sT1}, s{sT0}, 13")
    e(f"s_add_u32 s{sT1}, s{sT1}, {XB}")
    e(f"v_add_u32 v{vXR}, s{sT1}, v{a0}")
    for k in range(1, 4): e(f"v_xor_b32 v{vXR+k}, {k << 5}, v{vXR}")
    e(f"s_lshr_b32 s{sT1}, s{sW}, 2")
    e(f"s_mul_i32 s{sT1}, s{sT1}, {GAM}")
    e(f"s_and_b32 s{sT2}, s{sW}, 3")
    if not dft:
        t0, t1, a = vT, vT + 1, vT + 2
        e(f"v_lshrrev_b32 v{t0}, 4, v{vL}")
        e(f"v_lshlrev_b32 v{a}, 10, v{t0}")
        e(f"v_bfe_u32 v{t1}, v{vL}, 3, 1")
        e(f"v_lshl_or_b32 v{a}, v{t1}, 8, v{a}")
        e(f"v_lshl_or_b32 v{a}, v{t1}, 5, v{a}")
        e(f"v_bfe_u32 v{t1}, v{vL}, 2, 1")
        e(f"v_lshl_or_b32 v{a}, v{t1}, 7, v{a}")
        e(f"v_and_b32 v{t1}, 1, v{t0}")
        e(f"v_lshl_or_b32 v{a}, v{t1}, 6, v{a}")
        e(f"v_and_b32 v{t1}, 1, v{vL}")
        e(f"v_lshl_or_b32 v{a}, v{t1}, 4, v{a}")
        e(f"v_bfe_u32 v{t1}, v{vL}, 1, 1")
        e(f"v_lshl_or_b32 v{a}, v{t1}, 3, v{a}")
        e(f"s_lshl_b32 s{sT2}, s{sT2}, 5")
        e(f"v_xor_b32 v{vWR}, s{sT2}, v{a}")
        e(f"v_add_u32 v{vWR}, s{sT1}, v{vWR}")
        e(f"v_xor_b32 v{vWR+1}, 32, v{vWR}")
    else:
        e(f"s_lshl_b32 s{sT2}, s{sT2}, 12")
        e(f"s_add_u32 s{sT1}, s{sT1}, s{sT2}")
        e(f"v_add_u32 v{vWR}, s{sT1}, v{a0}")
        for k in range(1, 4): e(f"v_xor_b32 v{vWR+k}, {k << 5}, v{vWR}")
        for k in range(4): e(f"v_xor_b32 v{vWR1+k}, 4096, v{vWR+k}")
    e(f"v_mov_b32 v{vCS}, 0")
    e(f"s_mov_b32 s{sK1}, 0x3f803f80")
    pend = chunk_ops(1) + chunk_ops(2)
    NUP = 0 if dft else 2
    for _ in range(NUP): pend.pop(0)()
    common_setup(vCL, statlds)
    idle_setup()
    stat_row()
    stamp(1)

    def reads(t):
        c, j = divmod(t, 4); s = t & 1; st = (c % 3) * STG
        X = [lambda si=si: e(f"ds_read_b128 {vr(xf(s,si),4)}, v{vXR+j} offset:{st + si*4096}") for si in range(2)]
        if not dft:
            Wr = [lambda ui=ui, i=i: e(f"ds_read_b64_tr_b16 {vr(wf(s,ui)+2*i,2)}, v{vWR+ui} offset:{st + j*4096 + i*512}")
                  for ui in range(2) for i in range(2)]
            return [Wr[0], Wr[1], X[0], Wr[2], Wr[3], X[1]]
        Wr = [lambda ui=ui: e(f"ds_read_b128 {vr(wf(s,ui),4)}, v{(vWR if ui == 0 else vWR1)+j} offset:{st}") for ui in range(2)]
        return [Wr[0], X[0], Wr[1], X[1]]
    def stat_dma(b): tk["sd"] = dma(sMX, statlds, vL16, SWS, f"s{sSD}", ioff=b * 1024, sc1=True, both=True)
    def stat_reads():
        e(f"ds_read_b64 {pr(vG)}, v{vGL}"); e(f"ds_read_b64 {pr(vG+2)}, v{vGL} offset:256")
        for i in range(7): e(f"ds_read_b64 {pr(CPR+2*i)}, v{vCL} offset:{2048*i}")
    def mean_mfma(n):
        ui, si = SNAKE[n]
        A, B = (vAC, vBM + (ui * 2 + si) * 2)
        if dft: A, B = B, A
        e(f"v_mfma_f32_32x32x8_bf16 {vr(acc(ui,si),16)}, {pr(A)}, {pr(B)}, {vr(acc(ui,si),16)}")
    Q = [(2, lambda: tk.__setitem__("tag", tag_issue())), (5, tag_check)] + [(5, f) for f in rec(stat_store)]
    Q += side_mid
    Q += [(23.5, f) for f in rec(stat_reads)] + [(25, f) for f in rec(tag_reduce)] + [(25, stat_check)] + [(25, f) for f in rec(stat_prep)]
    Q += [(27, "mean")] + side_end

    fine = not dft
    g.wait(first[0] if fine else first[3]); e("s_barrier")
    stamp(3)
    for f in reads(0): f()
    for t in range(28):
        c, j = divmod(t, 4); s = t & 1
        g.wait(g.lastlg())
        nxt = reads(t + 1) if t < 27 else []
        bar = (j == 3) or (fine and c == 0)
        for gap, (ui, si) in enumerate(SNAKE):
            if bar and gap == 1:
                if j < 3: g.wait(first[j + 1])
                else: g.wait(ctok.get(c + 1), tk["sd"] if c == 5 else None, g.lastlg())
                e("s_barrier")
                if j == 3:
                    if "lstamp" in OPT: stamp(11 + c)
                    assert len(pend) <= 2, (t, len(pend))
                    if c == 4: pend += [lambda: stat_dma(0), lambda: stat_dma(1)]
                    pend += chunk_ops(c + 3) if c + 3 < 7 else extra_chunk(c + 3)
            A, B = (wf(s, ui), xf(s, si)) if not dft else (xf(s, si), wf(s, ui))
            mf(acc(ui, si), A, B, t == 0)
            if gap >= (1 if bar else 0):
                for _ in range(2):
                    if nxt: nxt.pop(0)()
            if c == 0 and gap == 3:
                for i in range(4): e(f"v_dot2c_f32_bf16 v{vCS}, s{sK1}, v{wf(s,0)+i}")
            fast = c == 0 or len(pend) > 6
            if pend and (fast or gap in (1, 3)) and not (j == 3 and gap == 1): pend.pop(0)()
            n = 0; rate = 5 if t >= 24 else 3
            while Q and Q[0][0] <= t + gap / 4 and Q[0][1] != "mean" and n < rate:
                Q.pop(0)[1](); n += 1
        while nxt: nxt.pop(0)()
    while Q[0][1] != "mean": Q.pop(0)[1]()
    Q.pop(0)
    for n in range(4):
        mean_mfma(n)
        if pend: pend.pop(0)()
        for _ in range(4):
            if Q: Q.pop(0)[1]()
    while Q: Q.pop(0)[1]()
    for f in pend: f()
    stamp(4)

def stamps_out():
    if not STAMPS: return
    g.wait_all(); stamp(10)
    e(f"s_lshl_b32 s{sT0}, s2, 3"); e(f"s_add_u32 s{sT0}, s{sT0}, s{sW}")
    e(f"s_lshl_b32 s{sT0}, s{sT0}, 7"); e(f"s_add_u32 s{sT0}, s{sT0}, {TS_OFF}")
    e(f"v_mov_b32 v{vT+1}, 0")
    e("s_memtime s[100:101]"); g.wait_all(vm=False); e(f"s_sub_u32 s{sST+18}, s100, s{sST+18}")
    for i in range(20):
        e(f"v_mov_b32 v{vT}, s{sST+i}")
        e(f"buffer_store_dword v{vT}, v{vT+1}, {S4(SWS)}, s{sT0} offen offset:{4*i}")

vTR, vA1, vA2, vA3 = 36, 37, 38, 39
vHS, vCLf, vPF = 11, 12, vPA
def ffn_idle():
    srd(SWD, pWD, 1605632)
    e(f"s_lshr_b32 s{sT1}, s2, 3")
    e(f"s_mul_i32 s{sR2}, s{sT1}, 37")
    e(f"s_lshr_b32 s{sR2}, s{sR2}, 8")
    e(f"s_mul_i32 s{sC2}, s{sR2}, 7")
    e(f"s_sub_u32 s{sC2}, s{sT1}, s{sC2}")
    e(f"s_and_b32 s{sT0}, s2, 1")
    e(f"s_lshl_b32 s{sT0}, s{sT0}, 4")
    e(f"s_add_u32 s{sR2}, s{sR2}, s{sT0}")
    e(f"s_and_b32 s{sT0}, s2, 6")
    e(f"s_lshl_b32 s{sT0}, s{sT0}, 1")
    e(f"s_add_u32 s{sR2}, s{sR2}, s{sT0}")
    e(f"s_lshl_b32 s{sPF}, s{sT1}, 3")
    e(f"s_add_u32 s{sPF}, s{sPF}, s{sW}")
    e(f"s_mul_i32 s{sPF}, s{sPF}, {56*128}")
    e(f"v_min_u32 v{vPF}, 55, v{vL}")
    e(f"v_lshlrev_b32 v{vPF}, 7, v{vPF}")
    e(f"v_bfe_u32 v{vT}, v{vL}, 2, 1")
    e(f"v_bfe_u32 v{vT+1}, v{vL}, 4, 1")
    e(f"v_xor_b32 v{vT}, v{vT}, v{vT+1}")
    e(f"v_and_b32 v{vT+1}, 3, v{vL}")
    e(f"v_lshlrev_b32 v{vT+1}, 4, v{vT+1}")
    e(f"v_lshl_add_u32 v{vSW}, v{vT}, 6, v{vT+1}")
    e(f"v_lshrrev_b32 v{vT}, 3, v{vL}")
    e(f"v_mul_u32_u24 v{vDD0}, 896, v{vT}")
    e(f"v_add_u32 v{vDD0}, v{vDD0}, v{vSW}")
    e(f"v_add_u32 v{vDD1}, {8*896}, v{vDD0}")
    e(f"s_lshl_b32 s{sT0}, s{sC2}, 3")
    e(f"s_add_u32 s{sD0}, s{sT0}, s{sW}")
    e(f"s_and_b32 s{sD1}, s{sW}, 3")
    e(f"s_add_u32 s{sD1}, s{sD1}, s{sT0}")
    e(f"s_add_u32 s{sD1}, s{sD1}, 8")
    e(f"s_lshl_b32 s{sD2}, s{sC2}, 7")
    e(f"s_lshr_b32 s{sD3}, s{sW}, 2")
    e(f"s_mul_i32 s{sD3}, s{sD3}, {56*16*896}")
    e(f"s_add_u32 s{sD3}, s{sD3}, s{sD2}")
    t1 = vT
    e(f"v_lshrrev_b32 v{t1}, 5, v{vL}")
    e(f"v_lshlrev_b32 v{vTR}, 10, v{t1}")
    e(f"v_bfe_u32 v{t1}, v{vL}, 3, 1")
    e(f"v_lshl_or_b32 v{vTR}, v{t1}, 8, v{vTR}")
    e(f"v_lshl_or_b32 v{vTR}, v{t1}, 6, v{vTR}")
    e(f"v_bfe_u32 v{t1}, v{vL}, 2, 1")
    e(f"v_lshl_or_b32 v{vTR}, v{t1}, 7, v{vTR}")
    e(f"v_bfe_u32 v{t1}, v{vL}, 4, 1")
    e(f"v_lshl_or_b32 v{vTR}, v{t1}, 5, v{vTR}")
    e(f"v_and_b32 v{t1}, 1, v{vL}")
    e(f"v_lshl_or_b32 v{vTR}, v{t1}, 4, v{vTR}")
    e(f"v_bfe_u32 v{t1}, v{vL}, 1, 1")
    e(f"v_lshl_or_b32 v{vTR}, v{t1}, 3, v{vTR}")
    e(f"s_and_b32 s{sT0}, s{sW}, 1")
    e(f"s_lshl_b32 s{sT0}, s{sT0}, 6")
    e(f"v_xor_b32 v{vTR}, s{sT0}, v{vTR}")
    e(f"s_lshr_b32 s{sT1}, s{sW}, 2")
    e(f"s_mul_i32 s{sT0}, s{sT1}, {GAM}")
    e(f"v_add_u32 v{vA1}, s{sT0}, v{vTR}")
    e(f"s_lshl_b32 s{sT0}, s{sT1}, 13")
    e(f"s_add_u32 s{sT0}, s{sT0}, {XB}")
    e(f"v_add_u32 v{vA2}, s{sT0}, v{vTR}")
    e(f"s_lshl_b32 s{sT0}, s{sT1}, 14")
    e(f"s_add_u32 s{sT0}, s{sT0}, {LATE}")
    e(f"v_add_u32 v{vA3}, s{sT0}, v{vTR}")
    e(f"s_and_b32 s{sT0}, s{sW}, 1")
    e(f"s_lshl_b32 s{sT0}, s{sT0}, 1")
    e(f"s_lshl_b32 s{sT1}, s{sRB}, 2")
    e(f"s_add_u32 s{sT0}, s{sT0}, s{sT1}")
    e(f"s_mul_i32 s{sT0}, s{sT0}, 112")
    e(f"s_lshl_b32 s{sT1}, s{sCB}, 3")
    e(f"s_add_u32 s{sT0}, s{sT0}, s{sT1}")
    e(f"s_add_u32 s{sHS0}, s{sT0}, s{sW}")
    e(f"s_xor_b32 s{sT1}, s{sW}, 1")
    e(f"s_add_u32 s{sHS1}, s{sT0}, s{sT1}")
    e(f"s_lshl_b32 s{sHS0}, s{sHS0}, 10")
    e(f"s_lshl_b32 s{sHS1}, s{sHS1}, 10")
    e(f"v_add_u32 v{vHS}, {112*1024}, v{vL16}")
def gelu_consts():
    for si in range(2):
        e(f"v_rcp_f32 v{vT+2+si}, v{vG+2*si+1}")
        e(f"v_mul_f32 v{vS2+si}, v{vG+2*si+1}, v{vG+2*si+1}")
    for si in range(2):
        e(f"v_mul_f32 v{vK0+si}, 0xc0135761, v{vT+2+si}")
        e(f"v_mul_f32 v{vT+2+si}, v{vT+2+si}, v{vT+2+si}")
    for si in range(2): e(f"v_mul_f32 v{vT+2+si}, {fhex(0.044715)}, v{vT+2+si}")
    for si in range(2): e(f"v_mul_f32 v{vK1+si}, v{vK0+si}, v{vT+2+si}")
def wd_dma(ldsoff, kind, koff, b):
    if b == 0:
        e(f"s_add_u32 s{sDT}, s{sD1 if kind == 2 else sD0}, {koff}")
        e(f"s_cmp_ge_u32 s{sDT}, 56")
        e(f"s_cselect_b32 s{sT4}, {0 if kind == 1 else -56}, {56 if kind == 1 else 0}")
        e(f"s_add_u32 s{sDT}, s{sDT}, s{sT4}")
        e(f"s_mul_i32 s{sDT}, s{sDT}, {16*896}")
        e(f"s_add_u32 s{sDT}, s{sDT}, s{sD3 if kind == 2 else sD2}")
    return dma(sMX, ldsoff + b * 1024, vDD0 + b, SWD, f"s{sDT}")
wtok = {}
def wd_chunk(c):
    i = c - 7; st = (c % 3) * STG
    L = []
    if c == 7 and "nopf" not in OPT: L.append(lambda: e(f"buffer_load_dword v{vDUM}, v{vPF}, {S4(SWD)}, s{sPF} offen"))
    for kind, base in ((0, st), (1, GAM + st), (2, XB + st)):
        for b in range(2):
            L.append(lambda kind=kind, base=base, b=b: wtok.__setitem__(c, wd_dma(base, kind, 12 * i, b)))
    return L
phase1(False, vCLf, MISC, lambda: None, ffn_idle, [], [(27, f) for f in rec(gelu_consts)], wd_chunk)

def wdr(k):
    k %= 48
    return 128 + 4 * k if k < 32 else 64 + 4 * (k - 32)
def wd_reads(i):
    st = ((7 + i) % 3) * STG
    return [lambda k=k: tr(wdr(12 * i + k), vA1, st + k * 2048) for k in range(8)] + \
           [lambda k=k: tr(wdr(12 * i + 8 + k), vA2, st + k * 2048) for k in range(4)]
def gelu_tile(n, fill):
    ui, si = SNAKE[n]
    A = acc(ui, si); Q = vT; PK = SR if n & 1 else 28
    sel = f" op_sel:[0,{si},{si}] op_sel_hi:[1,{si},{si}]"
    ops = []
    for j in range(0, 8, 2): ops.append(f"v_pk_mul_f32 {pr(Q+j)}, {pr(A+j)}, {pr(A+j)}")
    for j in range(0, 8, 2): ops.append(f"v_pk_fma_f32 {pr(Q+j)}, {pr(Q+j)}, {pr(vK1)}, {pr(vK0)}" + sel)
    for j in range(0, 8, 2): ops.append(f"v_pk_mul_f32 {pr(Q+j)}, {pr(Q+j)}, {pr(A+j)}")
    for j in range(8): ops.append(f"v_exp_f32 v{Q+j}, v{Q+j}")
    for j in range(0, 8, 2): ops.append(f"v_pk_mul_f32 {pr(A+8+j)}, {pr(A+8+j)}, {pr(A+j)}")
    for j in range(0, 8, 2): ops.append(f"v_pk_fma_f32 {pr(Q+j)}, {pr(Q+j)}, {pr(vS2)}, {pr(vS2)}" + sel)
    for j in range(8): ops.append(f"v_rcp_f32 v{Q+j}, v{Q+j}")
    for j in range(0, 8, 2): ops.append(f"v_pk_mul_f32 {pr(A+8+j)}, {pr(A+8+j)}, {pr(Q+j)}")
    for j in range(4): ops.append(f"v_cvt_pk_bf16_f32 v{PK+j}, v{A+8+2*j}, v{A+8+2*j+1}")
    per = max(1, len(ops) // max(1, len(fill)))
    for i, o in enumerate(ops):
        e(o)
        if fill and i % per == per - 1: fill.pop(0)()
    while fill: fill.pop(0)()
    return e(f"buffer_store_dwordx4 {vr(PK,4)}, v{vHS if si else vL16}, {S4(SWS)}, s{sHS1 if ui else sHS0} offen sc1")
late_dma = [lambda b=b: wd_dma(LATE, 0, 48, b) for b in range(2)] + [lambda b=b: wd_dma(LATE + 16384, 1, 48, b) for b in range(2)]
if "epi2" in OPT:
    gelu_tile(0, []); gelu_tile(1, [])
    g.wait(wtok[8]); e("s_barrier")
    gelu_tile(2, wd_reads(0)); gelu_tile(3, wd_reads(1))
    stamp(5)
    g.wait(wtok[9], g.lastlg()); e("s_barrier")
    th = g.lastvm()
    for f in wd_chunk(10) + late_dma: f()
    for f in wd_reads(2): f()
else:
    gelu_tile(0, [])
    g.wait(wtok[8]); e("s_barrier")
    gelu_tile(1, wd_reads(0))
    gelu_tile(2, wd_reads(1))
    g.wait(wtok[9], g.lastlg()); e("s_barrier")
    fill = []
    rd = wd_reads(2); dm = wd_chunk(10) + late_dma
    while rd or dm:
        if dm: fill.append(dm.pop(0))
        if rd: fill.append(rd.pop(0))
    th = gelu_tile(3, fill)
    stamp(5)
t_wd = g.lastvm()
ACC2, HF = 48, 32
vH0, vH1, vXO, vYW, vYR0, vYR1, vYR2 = 5, 6, 7, 8, 9, 10, 12
vWA, vWP, vWPL, vTQ, vTB = 1, 2, 3, 4, 15
XV = 28
vTR2, vA32 = 18, 11
e(f"s_lshr_b32 s{sT0}, s{sR2}, 1")
e(f"s_lshl_b32 s{sT0}, s{sT0}, 11")
e(f"s_add_u32 s{sT0}, s{sT0}, {FL_OFF}")
e(f"v_lshl_add_u32 v{vT}, v{vL}, 7, s{sT0}")
poll_setup(vT, 14)
g.wait(th); e("s_barrier")
flag_store()
stamp(6)
e(f"s_lshr_b32 s{sT1}, s{sW}, 2")
e(f"s_bfe_u32 s{sT0}, s{sW}, 0x10001")
e(f"s_lshl_b32 s{sK0}, s{sR2}, 1")
e(f"s_add_u32 s{sK0}, s{sK0}, s{sT0}")
e(f"s_mul_i32 s{sHO}, s{sK0}, 112")
e(f"s_mul_i32 s{sT0}, s{sT1}, 56")
e(f"s_add_u32 s{sHO}, s{sHO}, s{sT0}")
e(f"s_and_b32 s{sT0}, s{sW}, 1")
e(f"s_lshl_b32 s{sT0}, s{sT0}, 2")
e(f"s_add_u32 s{sHO}, s{sHO}, s{sT0}")
e(f"s_lshl_b32 s{sT0}, s{sC2}, 3")
e(f"s_add_u32 s{sHO}, s{sHO}, s{sT0}")
e(f"s_lshl_b32 s{sHO}, s{sHO}, 10")
e(f"s_mov_b32 s{sCH}, s{sC2}")
e(f"s_lshl_b32 s{sMW}, s{sW}, 12")
e(f"s_lshr_b32 s{sT0}, s{sW}, 1")
e(f"s_lshl_b32 s{sT0}, s{sT0}, 13")
e(f"v_add_u32 v{vH0}, s{sT0}, v{vL16}")
e(f"v_add_u32 v{vH1}, 0x10000, v{vH0}")
e(f"s_add_u32 s{sT0}, s{sT0}, {LATE}")
e(f"v_add_u32 v{vTR2}, s{sT0}, v{vTR}")
e(f"v_mov_b32 v{vA32}, v{vA3}")
YIM, RED = 98304, 0
def fin_setup():
    srd(SO, pOUT, 1835008)
    i_, hf, tt = vT, vT + 1, vT + 2
    e(f"v_and_b32 v{i_}, 31, v{vL}")
    e(f"v_lshrrev_b32 v{hf}, 5, v{vL}")
    e(f"v_mul_u32_u24 v{vXO}, 57344, v{i_}")
    e(f"v_lshl_add_u32 v{vXO}, v{hf}, 4, v{vXO}")
    e(f"s_and_b32 s{sT1}, s{sW}, 1")
    e(f"s_lshl_b32 s{sT1}, s{sT1}, 5")
    e(f"s_lshr_b32 s{sT3}, s{sW}, 2")
    e(f"s_lshl_b32 s{sT2}, s{sT3}, 4")
    e(f"s_add_u32 s{sT2}, s{sT2}, s{sT1}")
    e(f"s_lshl_b32 s{sT0}, s{sC2}, 6")
    e(f"s_add_u32 s{sT0}, s{sT0}, s{sT2}")
    e(f"s_lshl_b32 s{sT0}, s{sT0}, 1")
    e(f"s_mul_i32 s{sK1}, s{sK0}, 896")
    e(f"s_add_u32 s{sK1}, s{sK1}, s{sT0}")
    tk["x"] = e(f"buffer_load_dwordx4 {vr(XV,4)}, v{vXO}, {S4(SX)}, s{sK1} offen")
    e(f"s_cmp_ge_u32 s{sC2}, 4")
    e(f"s_cselect_b32 s{sMIR}, 1, 0")
    e(f"s_cselect_b64 vcc, -1, 0")
    e(f"v_lshlrev_b32 v{tt}, 6, v{i_}")
    e(f"v_add_u32 v{tt}, s{sK0}, v{tt}")
    e(f"v_sub_u32 v{tt+1}, 0x800, v{tt}")
    e(f"v_and_b32 v{tt+1}, 0x7ff, v{tt+1}")
    e(f"v_cndmask_b32 v{tt}, v{tt}, v{tt+1}, vcc")
    e(f"v_lshrrev_b32 v{tt}, 5, v{tt}")
    e(f"v_cvt_f32_u32 v{vTQ}, v{tt}")
    e(f"v_mul_u32_u24 v{tt}, v{tt}, v{hf}")
    e(f"v_mul_f32 v{vTQ}, {fhex(1/64)}, v{vTQ}")
    e(f"s_lshl_b32 s{sT0}, s{sT3}, 1")
    e(f"v_subrev_u32 v{tt}, s{sT0}, v{tt}")
    e(f"v_cvt_f32_i32 v{vTB}, v{tt}")
    e(f"v_mul_f32 v{vTB}, {fhex(1/8)}, v{vTB}")
    e(f"s_bfe_u32 s{sT0}, s{sW}, 0x10001")
    e(f"s_lshl_b32 s{sT0}, s{sT0}, 13")
    e(f"s_add_u32 s{sT0}, s{sT0}, {YIM}")
    e(f"v_lshl_add_u32 v{tt}, v{i_}, 8, s{sT0}")
    e(f"v_and_b32 v{tt+1}, 15, v{vL}")
    e(f"s_lshr_b32 s{sT1}, s{sT1}, 2")
    e(f"v_lshl_add_u32 v{tt+2}, v{hf}, 1, s{sT1}")
    e(f"v_xor_b32 v{tt+2}, v{tt+2}, v{tt+1}")
    e(f"v_lshl_add_u32 v{vYW}, v{tt+2}, 4, v{tt}")
    e(f"s_lshl_b32 s{sT0}, s{sT3}, 14")
    e(f"v_add_u32 v{vYW}, s{sT0}, v{vYW}")
    e(f"s_lshr_b32 s{sT2}, s{sT2}, 2")
    e(f"v_lshl_add_u32 v{tt+2}, v{hf}, 1, s{sT2}")
    e(f"v_sub_u32 v{tt+3}, 14, v{tt+2}")
    e(f"v_cndmask_b32 v{tt+2}, v{tt+2}, v{tt+3}, vcc")
    e(f"v_add_u32 v{tt+3}, 2, v{tt+2}")
    e(f"v_and_b32 v{tt+3}, 15, v{tt+3}")
    e(f"v_xor_b32 v{tt+2}, v{tt+2}, v{tt+1}")
    e(f"v_xor_b32 v{tt+3}, v{tt+3}, v{tt+1}")
    e(f"v_lshl_add_u32 v{vYR0}, v{tt+2}, 4, v{tt}")
    e(f"v_xor_b32 v{vYR1}, 16, v{vYR0}")
    e(f"v_lshl_add_u32 v{vYR2}, v{tt+3}, 4, v{tt}")
def wop_setup():
    e(f"s_sub_u32 s{sT0}, 64, s{sK0}")
    e(f"s_sub_u32 s{sT1}, 6, s{sC2}")
    e(f"s_cmp_lg_u32 s{sMIR}, 0")
    e(f"s_cselect_b32 s{sT0}, s{sT0}, s{sK0}")
    e(f"s_cselect_b32 s{sT1}, s{sT1}, s{sC2}")
    e(f"s_and_b32 s{sT0}, s{sT0}, 31")
    e(f"s_lshl_b32 s{sG0}, s{sT0}, 16")
    e(f"s_lshl_b32 s{sT1}, s{sT1}, 7")
    e(f"s_add_u32 s{sG0}, s{sG0}, s{sT1}")
    e(f"s_lshr_b32 s{sT0}, s{sW}, 2")
    e(f"s_lshl_b32 s{sT0}, s{sT0}, 15")
    e(f"s_add_u32 s{sG0}, s{sG0}, s{sT0}")
    e(f"s_and_b32 s{sT0}, s{sW}, 1")
    e(f"s_lshl_b32 s{sT0}, s{sT0}, 14")
    e(f"s_add_u32 s{sG0}, s{sG0}, s{sT0}")
    e(f"s_add_u32 s{sG0}, s{sG0}, {W_OFF}")
    e(f"s_add_u32 s{sG1}, s{sG0}, 128")
    e(f"v_lshrrev_b32 v{vT}, 3, v{vL}")
    e(f"v_lshl_add_u32 v{vWA}, v{vT}, 9, v{vSW}")
    e(f"s_lshl_b32 s{sT0}, s{sMIR}, 5")
    e(f"v_cmp_gt_u32 vcc, s{sT0}, v{vL}")
    e(f"v_lshlrev_b32 v{vT}, 9, v{vL}")
    e(f"v_mov_b32 v{vWP}, {BIG}")
    e(f"v_cndmask_b32 v{vWP}, v{vWP}, v{vT}, vcc")
    e(f"v_bfe_u32 v{vT+1}, v{vL}, 1, 1")
    e(f"v_lshlrev_b32 v{vT+1}, 6, v{vT+1}")
    e(f"v_lshl_add_u32 v{vT}, v{vL}, 7, v{vT+1}")
    e(f"s_add_u32 s{sT0}, s{sMW}, {LATE}")
    e(f"v_add_u32 v{vT}, s{sT0}, v{vT}")
    e(f"v_mov_b32 v{vWPL}, 0x40000")
    e(f"v_cndmask_b32 v{vWPL}, v{vWPL}, v{vT}, vcc")
fin_setup(); wop_setup()
if "epi2" in OPT:
    g.wait(t_wd, g.lastlg()); e("s_barrier")
tp = poll_issue()
for f in wd_reads(3): f()
htok = {}
def h_ops(c):
    def one(n):
        htok[c] = dma(sMW, (c % 4) * 32768, vL16, SWS, f"s{sHO}", ioff=n * 1024, sc1=True, both=True)
        if n == 3:
            e(f"s_add_u32 s{sCH}, s{sCH}, 1")
            e(f"s_cmp_eq_u32 s{sCH}, 7")
            e(f"s_cselect_b32 s{sT4}, -6, 1")
            e(f"s_lshl_b32 s{sT4}, s{sT4}, 13")
            e(f"s_add_u32 s{sHO}, s{sHO}, s{sT4}")
    return [lambda n=n: one(n) for n in range(4)]
poll_check(tp)
g.wait(g.lastlg()); e("s_barrier")
stamp(7)
for f in h_ops(0): f()
e("s_barrier")
for f in h_ops(1): f()
e(f"v_lshrrev_b32 v{vT}, 1, v{vL}")
e(f"v_lshlrev_b32 v{vT}, 11, v{vT}")
e(f"v_and_b32 v{vT+1}, 1, v{vL}")
e(f"v_lshl_add_u32 v{vT}, v{vT+1}, 7, v{vT}")
e(f"v_add_u32 v{vT}, {FL_OFF + 14*128}, v{vT}")
poll_setup(vT, 32)
g.wait(htok[0]); e("s_barrier")
stamp(8)
def hread(k):
    c, n = divmod(k, 8); st = c % 4
    return e(f"ds_read_b128 {vr(HF+4*(k%4),4)}, v{vH0 + (st >> 1)} offset:{(st & 1)*32768 + n*1024}")
FB, WA, YA = wdr(8), wdr(12), wdr(16)
PV, YP, YV, XU = wdr(20), wdr(21), wdr(26), wdr(28)
def f64_gen():
    for j in range(16):
        for h in range(2):
            s2 = 16 * (j // 4) + 2 * (j % 4) + h
            if s2: e(f"v_fmamk_f32 v{vT+h}, v{vTQ}, {fhex(float(s2))}, v{vTB}")
            e(f"v_cos_f32 v{vT+2+h}, v{vT+h if s2 else vTB}")
        e(f"v_cvt_pk_bf16_f32 v{FB+j}, v{vT+2}, v{vT+3}")
def x_unpack():
    for j in range(8):
        if j & 1: e(f"v_and_b32 v{XU+j}, 0xffff0000, v{XV+j//2}")
        else: e(f"v_lshlrev_b32 v{XU+j}, 16, v{XV+j//2}")
    e(f"s_lshl_b32 s{sT0}, s{sW}, 11")
    e(f"v_add_u32 v{vT+6}, s{sT0}, v{vL16}")
    e(f"v_xor_b32 v{vT+7}, 8192, v{vT+6}")
    for q in range(1, 4): e(f"v_xor_b32 v{vT+q}, {((q >> 1)*4 + (q & 1)) << 4}, v{vYW}")
def w_ops():
    def one(n):
        tk["w"] = dma(sMW, LATE + n * 1024, vWA, SWS, f"s{sG0}", sc1=True)
        e(f"s_add_u32 s{sG0}, s{sG0}, 4096")
    return [lambda n=n: one(n) for n in range(4)]
rt = {}
for k in range(3): rt[k] = hread(k)
late = [lambda k=k: tr(wdr(48 + k), vA32, k * 2048) for k in range(8)]
pend = h_ops(2) + h_ops(3) + [lambda: tk.__setitem__("p2", poll_issue())]
Q = [(12, f) for f in rec(f64_gen)] + [(40, f) for f in rec(x_unpack)]
for k in range(56):
    c, n = divmod(k, 8)
    if n == 5:
        if c == 2: poll_check(tk["p2"])
        if c == 5:
            g.wait(tk["pv"])
            g.wait(e(f"ds_write_b16 v{vWPL}, v{PV}"))
        if c == 6: g.wait(t_yw)
        g.wait(htok.get(c + 1)); e("s_barrier")
        if "l2stamp" in OPT and c < 6: stamp(11 + c)
        if 1 <= c <= 3: pend += h_ops(c + 3)
        if c == 2: pend += w_ops()
        if c == 3: pend += [lambda: tk.__setitem__("pv", e(f"buffer_load_ushort v{PV}, v{vWP}, {S4(SWS)}, s{sG1} offen sc1"))]
    g.wait(rt[k])
    mf(ACC2, wdr(k), HF + 4 * (k % 4), k == 0)
    if k + 3 < 56: rt[k + 3] = hread(k + 3)
    if pend: pend.pop(0)()
    if k >= 8 and late: late.pop(0)()
    for _ in range(3):
        if Q and Q[0][0] <= k: Q.pop(0)[1]()
    if k == 45:
        assert not Q
        for q in range(4): tw = tr(WA + 4 * q, vTR2, q * 2048)
    if k == 47:
        g.wait(tw)
        for q in range(4): mf(YA, WA + 4 * q, FB + 4 * q, q == 0)
    if k == 51:
        for q in range(4):
            t_yw = e(f"ds_write_b128 v{vT+q if q else vYW}, {vr(YA+4*q,4)}")
    if k == 53:
        for p in range(2):
            e(f"ds_read_b128 {vr(YP+10*p,4)}, v{vYR0} offset:{p*16384}")
            e(f"ds_read_b128 {vr(YP+10*p+4,4)}, v{vYR1} offset:{p*16384}")
            t_yr = e(f"ds_read_b32 v{YP+10*p+8}, v{vYR2} offset:{p*16384}")
stamp(9)
g.wait(t_yr)
e(f"s_cmp_lg_u32 s{sMIR}, 0")
e("s_cbranch_scc1 L_mir")
snap = g.snapshot()
for j in range(8): e(f"v_add_f32 v{YV+j}, v{YP+j}, v{YP+10+j}")
e("s_branch L_mirj")
g.label("L_mir")
g.restore(snap)
for j in range(8): e(f"v_add_f32 v{YV+j}, v{YP+8-j}, v{YP+18-j}")
g.label("L_mirj")
e(f"s_cmp_ge_u32 s{sW}, 4")
e("s_cbranch_scc1 L_hi")
snap = g.snapshot()
e(f"ds_write_b128 v{vT+6}, {vr(ACC2+8,4)}")
e(f"ds_write_b128 v{vT+6}, {vr(ACC2+12,4)} offset:1024")
e("s_branch L_join")
g.label("L_hi")
g.restore(snap)
e(f"ds_write_b128 v{vT+6}, {vr(ACC2,4)}")
e(f"ds_write_b128 v{vT+6}, {vr(ACC2+4,4)} offset:1024")
for j in range(0, 8, 2): e(f"v_pk_mov_b32 {pr(ACC2+j)}, {pr(ACC2+8+j)}, {pr(ACC2+8+j)} op_sel:[0,1]")
g.label("L_join")
e(f"s_mov_b32 s14, 0xbfb8aa3b")
g.wait_all(vm=False); e("s_barrier")
e(f"ds_read_b128 {vr(HF,4)}, v{vT+7}")
e(f"ds_read_b128 {vr(HF+4,4)}, v{vT+7} offset:1024")
g.wait_all(vm=False)
Q_ = HF + 8
for j in range(0, 8, 2): e(f"v_pk_add_f32 {pr(ACC2+j)}, {pr(ACC2+j)}, {pr(HF+j)}")
for j in range(0, 8, 2): e(f"v_pk_mul_f32 {pr(Q_+j)}, {pr(ACC2+j)}, s[14:15] op_sel_hi:[1,0]")
for j in range(8): e(f"v_exp_f32 v{Q_+j}, v{Q_+j}")
for j in range(0, 8, 2): e(f"v_pk_mul_f32 {pr(YV+j)}, {pr(YV+j)}, {pr(ACC2+j)}")
for j in range(0, 8, 2): e(f"v_pk_add_f32 {pr(Q_+j)}, {pr(Q_+j)}, 1.0 op_sel_hi:[1,0]")
for j in range(8): e(f"v_rcp_f32 v{Q_+j}, v{Q_+j}")
for j in range(0, 8, 2): e(f"v_pk_fma_f32 {pr(XU+j)}, {pr(YV+j)}, {pr(Q_+j)}, {pr(XU+j)}")
for j in range(4): e(f"v_cvt_pk_bf16_f32 v{HF+j}, v{XU+2*j}, v{XU+2*j+1}")
e(f"buffer_store_dwordx4 {vr(HF,4)}, v{vXO}, {S4(SO)}, s{sK1} offen")
stamps_out()
e("s_endpgm")

g.raw(".p2align 3")
g.label("L_dft")
g.restore(snap_role)
FA, FBb, F00, F01 = 192, 208, 224, 240
RR = 160
vCT, vOW, vOR, vOG, vCLd, vRX = 40, 16, 48, 53, 52, 19
def const_dma():
    e(f"s_bitcmp1_b32 s{sW}, 0")
    srd_sel(SW1, pSS, pCS, 8388608)
    e(f"v_lshrrev_b32 v{vT}, 2, v{vL}")
    e(f"v_and_b32 v{vT+1}, 3, v{vL}")
    e(f"v_lshlrev_b32 v{vT+1}, 4, v{vT+1}")
    e(f"v_lshl_add_u32 v{vT}, v{vT}, 18, v{vT+1}")
    e(f"s_lshl_b32 s{sT0}, s{sRB}, 2")
    e(f"s_lshr_b32 s{sT1}, s{sW}, 1")
    e(f"s_add_u32 s{sT0}, s{sT0}, s{sT1}")
    e(f"s_lshl_b32 s{sT0}, s{sT0}, 12")
    dma(sMX, MISC, vT, SW1, f"s{sT0}")
    e(f"s_add_u32 s{sT0}, s{sT0}, {16 << 18}")
    dma(sMX, MISC + 1024, vT, SW1, f"s{sT0}")
def dft_idle():
    e(f"v_lshrrev_b32 v{vT}, 5, v{vL}")
    e(f"v_lshlrev_b32 v{vCT}, 9, v{vT}")
    e(f"v_bfe_u32 v{vT}, v{vL}, 2, 2")
    e(f"v_lshl_or_b32 v{vCT}, v{vT}, 6, v{vCT}")
    e(f"v_bfe_u32 v{vT}, v{vL}, 4, 1")
    e(f"v_lshl_or_b32 v{vCT}, v{vT}, 5, v{vCT}")
    e(f"v_and_b32 v{vT}, 3, v{vL}")
    e(f"v_lshl_or_b32 v{vCT}, v{vT}, 3, v{vCT}")
    e(f"s_and_b32 s{sT0}, s{sW}, 1")
    e(f"s_mul_i32 s{sT0}, s{sT0}, {8192+2048}")
    e(f"s_add_u32 s{sT0}, s{sT0}, {MISC}")
    e(f"v_add_u32 v{vCT}, s{sT0}, v{vCT}")
    e(f"v_xor_b32 v{vCT+1}, 2048, v{vCT}")
    e(f"s_bitcmp1_b32 s{sW}, 0")
    e(f"s_cselect_b32 s{sG0}, 0x80008000, 0")
    e(f"s_xor_b32 s{sG1}, s{sG0}, 0x80008000")
    e(f"v_and_b32 v{vT}, 31, v{vL}")
    e(f"v_lshrrev_b32 v{vT+1}, 5, v{vL}")
    e(f"s_lshr_b32 s{sT0}, s{sW}, 1")
    e(f"s_lshl_b32 s{sT0}, s{sT0}, 2")
    e(f"v_or_b32 v{vT+1}, s{sT0}, v{vT+1}")
    e(f"v_and_b32 v{vT+2}, 7, v{vL}")
    e(f"v_xor_b32 v{vT+1}, v{vT+1}, v{vT+2}")
    e(f"v_lshlrev_b32 v{vT+1}, 4, v{vT+1}")
    e(f"v_lshl_or_b32 v{vOW}, v{vT}, 11, v{vT+1}")
    e(f"s_and_b32 s{sT0}, s{sW}, 1")
    e(f"s_lshl_b32 s{sT1}, s{sT0}, 9")
    e(f"v_add_u32 v{vOW}, s{sT1}, v{vOW}")
    e(f"v_xor_b32 v{vOW+1}, 32, v{vOW}")
    e(f"s_lshl_b32 s{sT0}, s{sT0}, 6")
    e(f"v_xor_b32 v{vOR}, s{sT0}, v{vL16}")
    e(f"s_lshl_b32 s{sT0}, s{sW}, 13")
    e(f"v_add_u32 v{vOR}, s{sT0}, v{vOR}")
    for n in range(1, 4): e(f"v_xor_b32 v{vOR+n}, {n << 4}, v{vOR}")
    e(f"v_lshrrev_b32 v{vT}, 4, v{vL}")
    e(f"v_and_b32 v{vT+1}, 15, v{vL}")
    e(f"v_lshlrev_b32 v{vT+1}, 4, v{vT+1}")
    e(f"v_lshl_add_u32 v{vOG}, v{vT}, 9, v{vT+1}")
    e(f"s_lshl_b32 s{sR2}, s{sW}, 18")
    e(f"s_lshl_b32 s{sT0}, s{sRB}, 11")
    e(f"s_add_u32 s{sR2}, s{sR2}, s{sT0}")
    e(f"s_sub_u32 s{sT0}, s{sCB}, 14")
    e(f"s_lshl_b32 s{sT0}, s{sT0}, 8")
    e(f"s_add_u32 s{sR2}, s{sR2}, s{sT0}")
    e(f"s_add_u32 s{sR2}, s{sR2}, {W_OFF}")
    e(f"s_lshl_b32 s{sC2}, s{sW}, 9")
    e(f"s_add_u32 s{sC2}, s{sC2}, {XB + STG}")
    e(f"v_lshrrev_b32 v{vRX}, 5, v{vL}")
    e(f"v_lshl_add_u32 v{vRX}, v{vRX}, 5, s{sC2}")
def const_read():
    for si in range(2):
        for q in range(2):
            tr(FA + si * 8 + q * 4, vCT, si * 4096 + q * 1024, step=256)
            tr(FBb + si * 8 + q * 4, vCT + 1, si * 4096 + q * 1024, step=256)
def const_sign():
    for j in range(16):
        e(f"v_xor_b32 v{F00+j}, s{sG0}, v{FA+j}")
        e(f"v_xor_b32 v{F01+j}, s{sG1}, v{FBb+j}")
def r_exchange():
    e(f"v_lshl_add_u32 v{vT}, v{vROW}, 2, s{sC2}")
    for si in range(2): e(f"v_rcp_f32 v{vG+2*si+1}, v{vG+2*si+1}")
    for si in range(2): e(f"ds_write_b32 v{vT}, v{vG+2*si+1} offset:{si*128}")
def r_read():
    for si in range(2):
        for q in range(4):
            tk["rr", si] = e(f"ds_read_b128 {vr(RR+si*16+q*4,4)}, v{vRX} offset:{si*128 + (q >> 1)*64 + (q & 1)*16}")
phase1(True, vCLd, STG, const_dma, dft_idle,
       [(8, f) for f in rec(const_read)] + [(11, f) for f in rec(const_sign)],
       [(27, f) for f in rec(r_exchange)], lambda c: [])
r_read()
def zf(ui, si): return 128 + (ui * 2 + si) * 8
for si in range(2):
    g.wait(tk["rr", si])
    for ui in range(2):
        A = acc(ui, si)
        for j in range(0, 16, 2): e(f"v_pk_mul_f32 {pr(A+j)}, {pr(A+j)}, {pr(RR+si*16+j)}")
        for j in range(8): e(f"v_cvt_pk_bf16_f32 v{zf(ui,si)+j}, v{A+2*j}, v{A+2*j+1}")
for si in range(2):
    for q in range(2):
        mf(acc(0, si), zf(0, si) + 4 * q, F00 + si * 8 + 4 * q, q == 0)
        mf(acc(1, si), zf(0, si) + 4 * q, FBb + si * 8 + 4 * q, q == 0)
    for q in range(2):
        mf(acc(1, si), zf(1, si) + 4 * q, FA + si * 8 + 4 * q, False)
        mf(acc(0, si), zf(1, si) + 4 * q, F01 + si * 8 + 4 * q, False)
for si in range(2):
    for part in range(2):
        A = acc(part, si); PK = RR + (si * 2 + part) * 8
        for j in range(8): e(f"v_cvt_pk_bf16_f32 v{PK+j}, v{A+2*j}, v{A+2*j+1}")
        for q in range(2):
            e(f"ds_write_b128 v{vOW+q}, {vr(PK+4*q,4)} offset:{part*1024 + si*256}")
g.wait_all(vm=False); e("s_barrier")
tr_ = {}
for n in range(4):
    for part in range(2):
        tr_[n, part] = e(f"ds_read_b128 {vr(64+(n*2+part)*4,4)}, v{vOR+n} offset:{n*2048 + part*1024}")
for n in range(4):
    for part in range(2):
        g.wait(tr_[n, part])
        e(f"buffer_store_dwordx4 {vr(64+(n*2+part)*4,4)}, v{vOG}, {S4(SWS)}, s{sR2} offen sc1")
        e(f"s_add_u32 s{sR2}, s{sR2}, 32768")
stamp(5)
g.wait_all(); e("s_barrier")
flag_store()
stamps_out()
g.label("L_end")
e("s_endpgm")
g.raw(f""".section .rodata,"a"
.p2align 6
.amdhsa_kernel {KN}
  .amdhsa_next_free_vgpr 256
  .amdhsa_next_free_sgpr 102
  .amdhsa_accum_offset 256
  .amdhsa_group_segment_fixed_size 0
  .amdhsa_kernarg_size 96
  .amdhsa_user_sgpr_count 2
  .amdhsa_user_sgpr_kernarg_segment_ptr 1
  .amdhsa_system_sgpr_workgroup_id_x 1
.end_amdhsa_kernel""")
open(OUT, "w").write("\n".join(g.out) + "\n")
print("lines", len(g.out), "nops", g.nops)
```

```python
import sys, struct
from asmgen import *

OPT = set(a[2:] for a in sys.argv if a.startswith("--"))
STAMPS = "stamps" in OPT
OUT = [a for a in sys.argv[1:] if not a.startswith("--")]
OUT = OUT[0] if OUT else "k.s"
KN = "recurrent_scan__spectral_fnet__geglu_ffn__prompt_kernel"
def fhex(f): return hex(struct.unpack("<I", struct.pack("<f", f))[0])

H_OFF = 0
W_OFF = 0x700000
XST = 0x900000
FL_OFF = 0x908000
CP_OFF = 0x910000
TS_OFF = 0x990000
WS_SIZE = 0x9D0000 if STAMPS else 0x990000
GAM, STG, XB, MISC, LATE = 49152, 16384, 98304, 147456, 131072
BIG = 0x7F000000

g = Gen()
_rec = [None]
def e(text):
    if _rec[0] is not None:
        _rec[0].append(text); return None
    return g.e(text)
def rec(*fns):
    _rec[0] = L = []
    for f in fns: f()
    _rec[0] = None
    groups = []
    for t in L:
        if groups and t.startswith("s_cselect"): groups[-1].append(t)
        else: groups.append([t])
    return [(lambda gr=gr: [g.e(t) for t in gr]) for gr in groups]

sW, sRB, sCB, sT0, sT1, sXO, sWK, sF1, sMW, sMX, sT2, sT3, sT4 = 3, 4, 5, 6, 7, 8, 9, 10, 11, 12, 13, 14, 15
pX, pCS, pSS, pCD, pSD, pWG, pWU, pWD, pOUT, pDBG, pWS = 16, 18, 20, 22, 24, 28, 30, 32, 34, 36, 38
SX, SW0, SW1, SWD, SWS, SO, SD = 40, 44, 48, 52, 56, 60, 64
sPC = 68
sR2, sC2, sFLAG, sK0, sK1, sSPIN, sHO, sSD, sNON, sCH = 70, 71, 72, 73, 74, 75, 76, 77, 78, 79
sD0, sD1, sD2, sD3, sHS0, sHS1, sPF = 18, 19, 20, 21, 22, 23, 24
sG0, sG1 = 26, 27
sDT, sMIR = 68, 69
sST = 80
def stamp(i):
    if not STAMPS: return
    e(("s_memtime" if ("cyc" in OPT and i not in (0, 10)) else "s_memrealtime") + " s[100:101]")
    g.wait_all(vm=False); e(f"s_mov_b32 s{sST+i}, s100")
def S4(b): return sr(b, 4)
def srd(b, p, size):
    e(f"s_mov_b32 s{b}, s{p}"); e(f"s_and_b32 s{b+1}, s{p+1}, 0xffff")
    e(f"s_mov_b32 s{b+2}, {size}"); e(f"s_mov_b32 s{b+3}, 0x20000")
def srd_sel(b, p1, p0, size):
    e(f"s_cselect_b32 s{b}, s{p1}, s{p0}"); e(f"s_cselect_b32 s{b+1}, s{p1+1}, s{p0+1}")
    e(f"s_and_b32 s{b+1}, s{b+1}, 0xffff")
    e(f"s_mov_b32 s{b+2}, {size}"); e(f"s_mov_b32 s{b+3}, 0x20000")
def pr(r): return f"v[{r}:{r+1}]"

vL, vXD0, vXD1, vWD0, vWD1 = 0, 1, 2, 3, 4
vXR, vWR, vSW, vL16, vROW = 5, 9, 13, 14, 15
vEXP, vPOLL, vCS, vPA = 16, 17, 18, 19
vT = 20
SR = 32
vWR1 = 36
vDD0, vDD1 = 40, 41
vGA, vCA, vG = 42, 43, 44
vK0, vK1, vS2 = 48, 50, 52
vAC, vSTO, vGL, vZ, vFL, vDUM = 54, 56, 60, 61, 62, 63
ACC, XF, WF = 64, 128, 144
CPR, vBM = 160, 176
def acc(ui, si): return ACC + (ui * 2 + si) * 16
def xf(s, si): return XF + s * 8 + si * 4
def wf(s, ui): return WF + s * 8 + ui * 4
SNAKE = [(0, 0), (1, 0), (1, 1), (0, 1)]
tk = {}

spin_id = [0]
def spin(tok, loads, test, sleep=1):
    n = spin_id[0]; spin_id[0] += 1
    g.wait(tok)
    test()
    e(f"s_cbranch_vccz L_ok{n}")
    snap = g.snapshot()
    e(f"s_mov_b32 s{sSPIN}, 0x10000")
    g.label(f"L_spin{n}")
    e(f"s_sleep {sleep}")
    loads()
    e("s_waitcnt vmcnt(0)")
    test()
    e(f"s_cbranch_vccz L_ok{n}")
    e(f"s_sub_u32 s{sSPIN}, s{sSPIN}, 1")
    e(f"s_cmp_lg_u32 s{sSPIN}, 0")
    e(f"s_cbranch_scc1 L_spin{n}")
    g.label(f"L_ok{n}")
    g.restore(snap)
def poll_issue():
    return e(f"buffer_load_dword v{vPOLL}, v{vPA}, {S4(SWS)}, 0 offen sc1")
def poll_check(tok):
    spin(tok, poll_issue, lambda: e(f"v_cmp_ne_u32 vcc, v{vPOLL}, v{vEXP}"))
def poll_setup(vaddr, nlanes):
    e(f"s_cmp_eq_u32 s{sW}, 0")
    e(f"s_cselect_b32 s{sT0}, {nlanes}, 0")
    e(f"v_mov_b32 v{vPA}, {BIG}")
    e(f"v_mov_b32 v{vEXP}, s{sNON}")
    e(f"v_cmp_gt_u32 vcc, s{sT0}, v{vL}")
    e(f"v_cndmask_b32 v{vPA}, v{vPA}, v{vaddr}, vcc")
    e(f"v_cndmask_b32 v{vEXP}, 0, v{vEXP}, vcc")
def flag_store():
    return e(f"buffer_store_dword v{vSTO+1}, v{vFL}, {S4(SWS)}, s{sFLAG} offen sc1")
def bf16r(d, s):
    e(f"v_cvt_pk_bf16_f32 v{d}, v{s}, v{s}"); e(f"v_lshlrev_b32 v{d}, 16, v{d}")
def dma(m0s, m0imm, voff, srdb, soff, ioff=0, sc1=False, both=False):
    e(f"s_add_u32 m0, s{m0s}, {m0imm - (0 if both else ioff)}")
    return e(f"buffer_load_dwordx4 v{voff}, {S4(srdb)}, {soff} offen" + (f" offset:{ioff}" if ioff else "") + (" sc1" if sc1 else "") + " lds")
def mf(D, A, B, first): e(f"v_mfma_f32_32x32x16_bf16 {vr(D,16)}, {vr(A,4)}, {vr(B,4)}, " + ("0" if first else vr(D, 16)))
def tr(dst, a, off, step=512):
    e(f"ds_read_b64_tr_b16 {vr(dst,2)}, v{a} offset:{off}")
    return e(f"ds_read_b64_tr_b16 {vr(dst+2,2)}, v{a} offset:{off+step}")

hdr = open("recurrent_scan__spectral_fnet__geglu_ffn__prompt.s.ref").read().split("\n")
for l in hdr:
    if l.startswith(";") and "@launch" not in l: g.raw(l)
g.raw("; @launch grid=(256,1,1) block=(512,1,1) lds=163840")
g.raw(open("header.txt").read().rstrip())
if STAMPS: g.raw("; opts " + " ".join(sorted(OPT)))
g.raw('.amdgcn_target "amdgcn-amd-amdhsa--gfx950"\n.text')
g.raw(f".globl {KN}\n.p2align 8\n.type {KN},@function\n{KN}:")
e("s_cmp_ge_u32 s2, 0x100")
e("s_cbranch_scc1 L_end")
e("s_load_dwordx16 s[16:31], s[0:1], 0")
e("s_load_dwordx8 s[32:39], s[0:1], 64")
e(f"s_memrealtime s[{sK1}:{sK1+1}]")
e(f"s_getpc_b64 s[{sPC}:{sPC+1}]")
g.label("L_pc")
e(f"v_lshlrev_b32 v{vT}, 7, v0")
e(f"v_min_u32 v{vT}, L_end-L_pc, v{vT}")
e(f"global_load_dword v{vDUM}, v{vT}, s[{sPC}:{sPC+1}]")
e(f"v_lshrrev_b32 v{vT+2}, 6, v0")
e(f"v_and_b32 v{vL}, 63, v0")
e(f"v_readfirstlane_b32 s{sW}, v{vT+2}")
if STAMPS:
    e("s_memrealtime s[100:101]"); g.wait_all(vm=False); e(f"s_mov_b32 s{sST}, s100")
    e("s_memtime s[100:101]"); g.wait_all(vm=False); e(f"s_mov_b32 s{sST+18}, s100")
e(f"s_lshr_b32 s{sT1}, s2, 3")
e(f"s_bfe_u32 s{sT3}, s2, 0x20001")
e(f"s_mul_i32 s{sT4}, s{sT3}, 28")
e(f"s_add_u32 s{sT4}, s{sT4}, s{sT1}")
e(f"s_lshr_b32 s{sCB}, s{sT4}, 3")
e(f"s_and_b32 s{sRB}, s{sT4}, 7")
e(f"s_and_b32 s{sT0}, s{sT3}, 1")
e(f"s_add_u32 s{sT0}, s{sT0}, 14")
e(f"s_and_b32 s{sT4}, s2, 4")
e(f"s_add_u32 s{sT4}, s{sT4}, s{sT1}")
e(f"s_sub_u32 s{sT4}, s{sT4}, 28")
e(f"s_cmp_ge_u32 s{sT1}, 28")
e(f"s_cselect_b32 s{sCB}, s{sT0}, s{sCB}")
e(f"s_cselect_b32 s{sRB}, s{sT4}, s{sRB}")
e(f"s_lshl_b32 s{sCH}, s{sRB}, 2")
e(f"s_lshr_b32 s{sCH}, 0x03625140, s{sCH}")
e(f"s_and_b32 s{sCH}, s{sCH}, 15")
e(f"s_and_b32 s{sT2}, s2, 1")
e(f"s_lshl_b32 s{sT2}, s{sT2}, 3")
e(f"s_add_u32 s{sRB}, s{sRB}, s{sT2}")
e(f"v_lshrrev_b32 v{vT+2}, 3, v{vL}")
e(f"v_lshrrev_b32 v{vT+3}, 4, v{vL}")
e(f"v_and_b32 v{vT+4}, 7, v{vL}")
e(f"v_xor_b32 v{vT+4}, v{vT+4}, v{vT+3}")
e(f"v_lshlrev_b32 v{vSW}, 4, v{vT+4}")
e(f"v_mul_u32_u24 v{vXD0}, 57344, v{vT+2}")
e(f"v_add_u32 v{vXD0}, v{vXD0}, v{vSW}")
e(f"v_xor_b32 v{vXD1}, 64, v{vXD0}")
e(f"v_add_u32 v{vXD1}, {8*57344}, v{vXD1}")
e(f"s_lshr_b32 s{sT0}, s{sW}, 1")
e(f"s_lshl_b32 s{sXO}, s{sRB}, 2")
e(f"s_add_u32 s{sXO}, s{sXO}, s{sT0}")
e(f"s_mul_i32 s{sXO}, s{sXO}, 896")
e(f"s_and_b32 s{sT0}, s{sW}, 1")
e(f"s_mul_i32 s{sT0}, s{sT0}, {16*57344}")
e(f"s_add_u32 s{sXO}, s{sXO}, s{sT0}")
e(f"s_lshl_b32 s{sT0}, s{sCH}, 7")
e(f"s_add_u32 s{sXO}, s{sXO}, s{sT0}")
e(f"s_lshl_b32 s{sMX}, s{sW}, 11")
e(f"v_lshlrev_b32 v{vL16}, 4, v{vL}")
e(f"s_lshl_b32 s{sHO}, s{sCB}, 3")
e(f"s_add_u32 s{sHO}, s{sHO}, s{sW}")
e(f"s_and_b32 s{sT2}, s{sHO}, 31")
e(f"s_lshl_b32 s{sT2}, s{sT2}, 6")
e(f"s_lshr_b32 s{sT3}, s{sHO}, 5")
e(f"s_add_u32 s{sT2}, s{sT2}, s{sT3}")
e(f"s_lshl_b32 s{sT3}, s{sRB}, 2")
e(f"s_add_u32 s{sT2}, s{sT2}, s{sT3}")
e(f"s_mul_i32 s{sT2}, s{sT2}, 896")
e(f"v_mov_b32 v{vT+5}, {BIG}")
e(f"v_cmp_gt_u32 vcc, 56, v{vL}")
e(f"v_cndmask_b32 v{vT+5}, v{vT+5}, v{vL16}, vcc")
g.wait_all(vm=False)
srd(SX, pX, 1835008)
tk["row"] = e(f"buffer_load_dwordx4 {vr(SR,4)}, v{vT+5}, {S4(SX)}, s{sT2} offen")
def issue_x(c, b):
    return dma(sMX, XB + (c % 3) * STG + b * 1024, vXD0 + b, SX, f"s{sXO}")
issue_x(0, 0); issue_x(0, 1)
e(f"s_cmp_ge_u32 s{sCB}, 14")
e("s_cbranch_scc1 L_dft")
snap_role = g.snapshot()

def tag_race():
    srd(SD, pDBG, 256)
    e(f"s_or_b32 s{sK1}, s{sK1}, 1")
    e(f"s_lshr_b32 s{sT0}, s2, 3")
    e(f"s_or_b32 s{sT0}, s{sT0}, s{sW}")
    e(f"s_lshl_b32 s{sT0}, s{sT0}, 12")
    e(f"v_mov_b32 v60, s{sK1}"); e(f"v_mov_b32 v{vZ}, 0")
    e(f"v_lshlrev_b32 v{vFL}, 24, v{vL}")
    e(f"buffer_atomic_cmpswap v[60:61], v{vFL}, {S4(SD)}, s{sT0} offen sc1")
def common_setup(vCL, statlds):
    srd(SWS, pWS, WS_SIZE)
    e(f"s_lshl_b32 s{sT3}, s{sRB}, 7")
    e(f"s_add_u32 s{sHO}, s{sHO}, s{sT3}")
    e(f"s_lshl_b32 s{sHO}, s{sHO}, 3")
    e(f"s_add_u32 s{sHO}, s{sHO}, {XST}")
    e(f"s_lshl_b32 s{sFLAG}, s{sCB}, 4")
    e(f"s_add_u32 s{sFLAG}, s{sFLAG}, s{sRB}")
    e(f"s_lshl_b32 s{sK0}, s{sFLAG}, 3")
    e(f"s_add_u32 s{sK0}, s{sK0}, s{sW}")
    e(f"s_lshl_b32 s{sK0}, s{sK0}, 8")
    e(f"s_add_u32 s{sK0}, s{sK0}, {CP_OFF}")
    e(f"s_and_b32 s{sT0}, s{sFLAG}, 0xf8")
    e(f"s_lshl_b32 s{sT1}, s{sT0}, 11")
    e(f"s_add_u32 s{sT1}, s{sT1}, {CP_OFF}")
    e(f"s_add_u32 s{sSD}, s{sT1}, s{sMX}")
    e(f"s_lshl_b32 s{sT2}, s{sRB}, 10")
    e(f"s_add_u32 s{sT2}, s{sT2}, {XST}")
    e(f"s_cmp_eq_u32 s{sW}, 7")
    e(f"s_cselect_b32 s{sSD}, s{sT2}, s{sSD}")
    e(f"v_lshrrev_b32 v{vT}, 5, v{vL}")
    e(f"v_xor_b32 v{vT}, s{sW}, v{vT}")
    e(f"v_and_b32 v{vT+1}, 31, v{vL}")
    e(f"v_lshlrev_b32 v{vT+1}, 3, v{vT+1}")
    e(f"v_lshl_add_u32 v{vT}, v{vT}, 8, v{vT+1}")
    e(f"v_add_u32 v{vCA}, s{sT1}, v{vT}")
    e(f"v_add_u32 v{vCL}, {statlds}, v{vT}")
    e(f"s_and_b32 s{sT0}, s{sW}, 1")
    e(f"s_lshl_b32 s{sT0}, s{sT0}, 9")
    e(f"v_lshl_add_u32 v{vT}, v{vROW}, 3, s{sT0}")
    e(f"v_add_u32 v{vGA}, s{sT2}, v{vT}")
    e(f"v_add_u32 v{vGL}, {statlds + 7*2048}, v{vT}")
    e(f"s_lshl_b32 s{sFLAG}, s{sRB}, 4")
    e(f"s_add_u32 s{sFLAG}, s{sFLAG}, s{sCB}")
    e(f"s_lshl_b32 s{sFLAG}, s{sFLAG}, 7")
    e(f"s_add_u32 s{sFLAG}, s{sFLAG}, {FL_OFF}")
    e(f"s_cmp_lg_u32 s{sW}, 0")
    e(f"s_cselect_b32 s{sFLAG}, {BIG}, s{sFLAG}")
def tag_issue():
    return e(f"buffer_load_dword v{vSTO+1}, v{vZ}, {S4(SD)}, 0 offen sc1")
def stat_row():
    a, q, t = vT, vT + 1, vT + 2
    g.wait(tk["row"])
    e(f"v_mov_b32 v{a}, 0"); e(f"v_mov_b32 v{q}, 0")
    for i in range(4):
        e(f"v_dot2c_f32_bf16 v{a}, s{sK1}, v{SR+i}")
        e(f"v_dot2c_f32_bf16 v{q}, v{SR+i}, v{SR+i}")
    e(f"v_permlane32_swap_b32 v{a}, v{q}")
    e(f"v_add_f32 v{a}, v{a}, v{q}")
    e(f"v_mov_b32 v{t}, v{a}")
    e(f"v_permlane16_swap_b32 v{a}, v{t}")
    e(f"v_add_f32 v{a}, v{a}, v{t}")
    for sh in (8, 4, 2, 1):
        e(f"v_add_f32_dpp v{a}, v{a}, v{a} row_ror:{sh} row_mask:0xf bank_mask:0xf")
    e(f"v_mul_f32 v{a}, {fhex(1/448)}, v{a}")
    e(f"v_mov_b32 v{q}, v{a}")
    e(f"v_permlane32_swap_b32 v{a}, v{q}")
    e(f"v_fma_f32 v{q}, -v{a}, v{a}, v{q}")
    e(f"v_max_f32 v{q}, 0, v{q}")
    bf16r(q, q)
    e(f"v_add_f32 v{q}, {fhex(1e-5)}, v{q}")
    bf16r(q, q)
    e(f"v_sqrt_f32 v{q}, v{q}")
    e(f"v_cvt_pk_bf16_f32 v{vSTO}, v{a}, v{q}")
def tag_check():
    spin(tk["tag"], tag_issue, lambda: e(f"v_cmp_eq_u32 vcc, 0, v{vSTO+1}"), sleep=2)
def stat_store():
    e(f"v_readfirstlane_b32 s{sNON}, v{vSTO+1}")
    e(f"buffer_store_dwordx2 {pr(vSTO)}, v{vFL}, {S4(SWS)}, s{sHO} offen sc1")
    e(f"v_mov_b32 v{vSTO+2}, v{vCS}")
    e(f"v_mov_b32 v{vSTO+3}, v{vSTO+1}")
    e(f"v_and_b32 v{vT}, 31, v{vL}")
    e(f"v_permlane32_swap_b32 v{vCS}, v{vSTO+2}")
    e(f"v_lshlrev_b32 v{vT}, 3, v{vT}")
    e(f"v_add_f32 v{vSTO+2}, v{vCS}, v{vSTO+2}")
    e(f"buffer_store_dwordx2 {pr(vSTO+2)}, v{vT}, {S4(SWS)}, s{sK0} offen sc1")
def stat_loads():
    e(f"buffer_load_dwordx2 {pr(vG)}, v{vGA}, {S4(SWS)}, 0 offen sc1")
    e(f"buffer_load_dwordx2 {pr(vG+2)}, v{vGA}, {S4(SWS)}, 0 offen offset:256 sc1")
    e(f"s_mov_b32 s{sT0}, 0")
    for i in range(7):
        e(f"buffer_load_dwordx2 {pr(CPR+2*i)}, v{vCA}, {S4(SWS)}, s{sT0} offen sc1")
        e(f"s_add_u32 s{sT0}, s{sT0}, 2048")
TAGS = [vG + 1, vG + 3] + [CPR + 2 * i + 1 for i in range(7)]
def tag_reduce():
    e(f"v_min3_u32 v{vT}, v{TAGS[0]}, v{TAGS[1]}, v{TAGS[2]}"); e(f"v_max3_u32 v{vT+1}, v{TAGS[0]}, v{TAGS[1]}, v{TAGS[2]}")
    for i in (3, 5, 7):
        e(f"v_min3_u32 v{vT}, v{vT}, v{TAGS[i]}, v{TAGS[i+1]}"); e(f"v_max3_u32 v{vT+1}, v{vT+1}, v{TAGS[i]}, v{TAGS[i+1]}")
    e(f"v_xor_b32 v{vT}, s{sNON}, v{vT}"); e(f"v_xor_b32 v{vT+1}, s{sNON}, v{vT+1}")
    e(f"v_or_b32 v{vT}, v{vT}, v{vT+1}")
def stat_check():
    first = [True]
    def test():
        if not first[0]: tag_reduce()
        first[0] = False
        e(f"v_cmp_ne_u32 vcc, 0, v{vT}")
    spin(None, stat_loads, test)
def stat_prep():
    c = CPR
    for i in range(1, 7): e(f"v_add_f32 v{c}, v{c}, v{CPR+2*i}")
    e(f"v_and_b32 v{vT}, 0xffff0000, v{c}")
    e(f"v_sub_f32 v{vT+1}, v{c}, v{vT}")
    e(f"v_and_b32 v{vT+2}, 0xffff0000, v{vT+1}")
    e(f"v_sub_f32 v{vT+1}, v{vT+1}, v{vT+2}")
    e(f"v_lshrrev_b32 v{vT}, 16, v{vT}")
    e(f"v_or_b32 v{vAC}, v{vT}, v{vT+2}")
    e(f"v_lshrrev_b32 v{vAC+1}, 16, v{vT+1}")
    e(f"v_cmp_gt_u32 vcc, 32, v{vL}")
    for si in range(2):
        e(f"v_and_b32 v{vT}, 0xffff, v{vG+2*si}")
        e(f"v_xor_b32 v{vT}, 0x8000, v{vT}")
        e(f"v_lshl_or_b32 v{vT+1}, v{vT}, 16, v{vT}")
        e(f"v_cndmask_b32 v{vBM+2*si}, 0, v{vT+1}, vcc")
        e(f"v_cndmask_b32 v{vBM+2*si+1}, 0, v{vT}, vcc")
        e(f"v_cndmask_b32 v{vBM+4+2*si}, v{vT+1}, v{vZ}, vcc")
        e(f"v_cndmask_b32 v{vBM+4+2*si+1}, v{vT}, v{vZ}, vcc")
        e(f"v_and_b32 v{vG+2*si+1}, 0xffff0000, v{vG+2*si}")

def tile_addr(perm):
    hf = vT + 2
    if perm:
        e(f"v_and_b32 v{vROW}, 19, v{vL}")
        e(f"v_bfe_u32 v{hf}, v{vL}, 2, 1"); e(f"v_lshl_or_b32 v{vROW}, v{hf}, 3, v{vROW}")
        e(f"v_bfe_u32 v{hf}, v{vL}, 3, 1"); e(f"v_lshl_or_b32 v{vROW}, v{hf}, 2, v{vROW}")
    else:
        e(f"v_and_b32 v{vROW}, 31, v{vL}")
    e(f"v_lshrrev_b32 v{hf}, 5, v{vL}")
    e(f"v_bfe_u32 v{vT+3}, v{vROW}, 1, 3")
    e(f"v_xor_b32 v{vT+3}, v{vT+3}, v{hf}")
    e(f"v_lshlrev_b32 v{vT+3}, 4, v{vT+3}")
    e(f"v_lshl_or_b32 v{vT+3}, v{vROW}, 7, v{vT+3}")
    return vT + 3

def phase1(dft, vCL, statlds, early_vm, idle_setup, side_mid, side_end, extra_chunk):
    def advance(regs):
        e(f"s_add_u32 s{sCH}, s{sCH}, 1")
        e(f"s_cmp_eq_u32 s{sCH}, 7")
        e(f"s_cselect_b32 s{sT4}, -6, 1")
        for r, step in regs:
            e(f"s_mul_i32 s{sT3}, s{sT4}, {step}")
            e(f"s_add_u32 s{r}, s{r}, s{sT3}")
    e(f"s_bitcmp1_b32 s{sW}, 0")
    if not dft:
        srd_sel(SW0, pWU, pWG, 1605632)
        e(f"v_mul_u32_u24 v{vWD0}, 3584, v{vT+2}")
        e(f"v_bfe_u32 v{vT+1}, v{vL}, 1, 2")
        e(f"v_bfe_u32 v{vT}, v{vL}, 4, 1")
        e(f"v_xor_b32 v{vT+1}, v{vT+1}, v{vT}")
        e(f"v_lshl_add_u32 v{vWD0}, v{vT+1}, 5, v{vWD0}")
        e(f"v_and_b32 v{vT+1}, 1, v{vL}")
        e(f"v_lshl_add_u32 v{vWD0}, v{vT+1}, 4, v{vWD0}")
        e(f"s_and_b32 s{sT0}, s{sW}, 1")
        e(f"s_lshl_b32 s{sT1}, s{sT0}, 6")
        e(f"v_xor_b32 v{vWD0}, s{sT1}, v{vWD0}")
        e(f"v_add_u32 v{vWD1}, {16*3584}, v{vWD0}")
        e(f"s_lshl_b32 s{sMW}, s{sT0}, 10")
        e(f"s_lshr_b32 s{sT0}, s{sW}, 2")
        e(f"s_mul_i32 s{sWK}, s{sT0}, {8*3584}")
        e(f"s_lshl_b32 s{sT0}, s{sT0}, 11")
        e(f"s_add_u32 s{sMW}, s{sMW}, s{sT0}")
        e(f"s_bfe_u32 s{sT0}, s{sW}, 0x10001")
        e(f"s_mul_i32 s{sT1}, s{sT0}, {GAM}")
        e(f"s_add_u32 s{sMW}, s{sMW}, s{sT1}")
        e(f"s_lshl_b32 s{sT0}, s{sT0}, 7")
        e(f"s_add_u32 s{sWK}, s{sWK}, s{sT0}")
        e(f"s_lshl_b32 s{sT0}, s{sCB}, 8")
        e(f"s_add_u32 s{sWK}, s{sWK}, s{sT0}")
        e(f"s_mul_i32 s{sT0}, s{sCH}, {64*3584}")
        e(f"s_add_u32 s{sWK}, s{sWK}, s{sT0}")
        e(f"s_add_u32 s{sF1}, s{sWK}, {32*3584}")
        wstep, lstep = 64 * 3584, 4096
    else:
        srd_sel(SW0, pSD, pCD, 401408)
        e(f"v_mul_u32_u24 v{vWD0}, 896, v{vT+2}")
        e(f"v_add_u32 v{vWD0}, v{vWD0}, v{vSW}")
        e(f"v_xor_b32 v{vWD1}, 64, v{vWD0}")
        e(f"v_add_u32 v{vWD1}, {8*896}, v{vWD1}")
        e(f"s_sub_u32 s{sT0}, s{sCB}, 14")
        e(f"s_lshl_b32 s{sT0}, s{sT0}, 2")
        e(f"s_lshr_b32 s{sT1}, s{sW}, 1")
        e(f"s_add_u32 s{sT0}, s{sT0}, s{sT1}")
        e(f"s_mul_i32 s{sWK}, s{sT0}, {32*896}")
        e(f"s_lshl_b32 s{sT0}, s{sCH}, 7")
        e(f"s_add_u32 s{sWK}, s{sWK}, s{sT0}")
        e(f"s_add_u32 s{sF1}, s{sWK}, {16*896}")
        e(f"s_lshr_b32 s{sT0}, s{sW}, 2")
        e(f"s_mul_i32 s{sMW}, s{sT0}, {GAM}")
        e(f"s_and_b32 s{sT0}, s{sW}, 3")
        e(f"s_lshl_b32 s{sT0}, s{sT0}, 12")
        e(f"s_add_u32 s{sMW}, s{sMW}, s{sT0}")
        wstep, lstep = 128, 1024
    def issue_w(c, i):
        t = dma(sMW, (c % 3) * STG + i * lstep, vWD0 + (i & 1), SW0, f"s{sWK if i < 2 else sF1}")
        if i == 3 and c < 6: advance([(sXO, 128), (sWK, wstep), (sF1, wstep)])
        return t
    ctok = {}
    first = [issue_w(0, i) for i in range(4)]
    def chunk_ops(c):
        def lastw(): ctok[c] = issue_w(c, 3)
        return [lambda b=b: issue_x(c, b) for b in range(2)] + [lambda i=i: issue_w(c, i) for i in range(3)] + [lastw]
    tag_race()
    early_vm()
    a0 = tile_addr(perm=dft)
    e(f"s_and_b32 s{sT0}, s{sW}, 1")
    e(f"s_lshl_b32 s{sT1}, s{sT0}, 13")
    e(f"s_add_u32 s{sT1}, s{sT1}, {XB}")
    e(f"v_add_u32 v{vXR}, s{sT1}, v{a0}")
    for k in range(1, 4): e(f"v_xor_b32 v{vXR+k}, {k << 5}, v{vXR}")
    e(f"s_lshr_b32 s{sT1}, s{sW}, 2")
    e(f"s_mul_i32 s{sT1}, s{sT1}, {GAM}")
    e(f"s_and_b32 s{sT2}, s{sW}, 3")
    if not dft:
        t0, t1, a = vT, vT + 1, vT + 2
        e(f"v_lshrrev_b32 v{t0}, 4, v{vL}")
        e(f"v_lshlrev_b32 v{a}, 10, v{t0}")
        e(f"v_bfe_u32 v{t1}, v{vL}, 3, 1")
        e(f"v_lshl_or_b32 v{a}, v{t1}, 8, v{a}")
        e(f"v_lshl_or_b32 v{a}, v{t1}, 5, v{a}")
        e(f"v_bfe_u32 v{t1}, v{vL}, 2, 1")
        e(f"v_lshl_or_b32 v{a}, v{t1}, 7, v{a}")
        e(f"v_and_b32 v{t1}, 1, v{t0}")
        e(f"v_lshl_or_b32 v{a}, v{t1}, 6, v{a}")
        e(f"v_and_b32 v{t1}, 1, v{vL}")
        e(f"v_lshl_or_b32 v{a}, v{t1}, 4, v{a}")
        e(f"v_bfe_u32 v{t1}, v{vL}, 1, 1")
        e(f"v_lshl_or_b32 v{a}, v{t1}, 3, v{a}")
        e(f"s_lshl_b32 s{sT2}, s{sT2}, 5")
        e(f"v_xor_b32 v{vWR}, s{sT2}, v{a}")
        e(f"v_add_u32 v{vWR}, s{sT1}, v{vWR}")
        e(f"v_xor_b32 v{vWR+1}, 32, v{vWR}")
    else:
        e(f"s_lshl_b32 s{sT2}, s{sT2}, 12")
        e(f"s_add_u32 s{sT1}, s{sT1}, s{sT2}")
        e(f"v_add_u32 v{vWR}, s{sT1}, v{a0}")
        for k in range(1, 4): e(f"v_xor_b32 v{vWR+k}, {k << 5}, v{vWR}")
        for k in range(4): e(f"v_xor_b32 v{vWR1+k}, 4096, v{vWR+k}")
    e(f"v_mov_b32 v{vCS}, 0")
    e(f"s_mov_b32 s{sK1}, 0x3f803f80")
    pend = chunk_ops(1) + chunk_ops(2)
    NUP = 0 if dft else 2
    for _ in range(NUP): pend.pop(0)()
    common_setup(vCL, statlds)
    idle_setup()
    stat_row()
    stamp(1)

    def reads(t):
        c, j = divmod(t, 4); s = t & 1; st = (c % 3) * STG
        X = [lambda si=si: e(f"ds_read_b128 {vr(xf(s,si),4)}, v{vXR+j} offset:{st + si*4096}") for si in range(2)]
        if not dft:
            Wr = [lambda ui=ui, i=i: e(f"ds_read_b64_tr_b16 {vr(wf(s,ui)+2*i,2)}, v{vWR+ui} offset:{st + j*4096 + i*512}")
                  for ui in range(2) for i in range(2)]
            return [Wr[0], Wr[1], X[0], Wr[2], Wr[3], X[1]]
        Wr = [lambda ui=ui: e(f"ds_read_b128 {vr(wf(s,ui),4)}, v{(vWR if ui == 0 else vWR1)+j} offset:{st}") for ui in range(2)]
        return [Wr[0], X[0], Wr[1], X[1]]
    def stat_dma(b): tk["sd"] = dma(sMX, statlds, vL16, SWS, f"s{sSD}", ioff=b * 1024, sc1=True, both=True)
    def stat_reads():
        e(f"ds_read_b64 {pr(vG)}, v{vGL}"); e(f"ds_read_b64 {pr(vG+2)}, v{vGL} offset:256")
        for i in range(7): e(f"ds_read_b64 {pr(CPR+2*i)}, v{vCL} offset:{2048*i}")
    def mean_mfma(n):
        ui, si = SNAKE[n]
        A, B = (vAC, vBM + (ui * 2 + si) * 2)
        if dft: A, B = B, A
        e(f"v_mfma_f32_32x32x8_bf16 {vr(acc(ui,si),16)}, {pr(A)}, {pr(B)}, {vr(acc(ui,si),16)}")
    Q = [(2, lambda: tk.__setitem__("tag", tag_issue())), (5, tag_check)] + [(5, f) for f in rec(stat_store)]
    Q += side_mid
    Q += [(23.5, f) for f in rec(stat_reads)] + [(25, f) for f in rec(tag_reduce)] + [(25, stat_check)] + [(25, f) for f in rec(stat_prep)]
    Q += [(27, "mean")] + side_end

    fine = not dft
    g.wait(first[0] if fine else first[3]); e("s_barrier")
    stamp(3)
    for f in reads(0): f()
    for t in range(28):
        c, j = divmod(t, 4); s = t & 1
        g.wait(g.lastlg())
        nxt = reads(t + 1) if t < 27 else []
        bar = (j == 3) or (fine and c == 0)
        for gap, (ui, si) in enumerate(SNAKE):
            if bar and gap == 1:
                if j < 3: g.wait(first[j + 1])
                else: g.wait(ctok.get(c + 1), tk["sd"] if c == 5 else None, g.lastlg())
                e("s_barrier")
                if j == 3:
                    if "lstamp" in OPT: stamp(11 + c)
                    assert len(pend) <= 2, (t, len(pend))
                    if c == 4: pend += [lambda: stat_dma(0), lambda: stat_dma(1)]
                    pend += chunk_ops(c + 3) if c + 3 < 7 else extra_chunk(c + 3)
            A, B = (wf(s, ui), xf(s, si)) if not dft else (xf(s, si), wf(s, ui))
            mf(acc(ui, si), A, B, t == 0)
            if gap >= (1 if bar else 0):
                for _ in range(2):
                    if nxt: nxt.pop(0)()
            if c == 0 and gap == 3:
                for i in range(4): e(f"v_dot2c_f32_bf16 v{vCS}, s{sK1}, v{wf(s,0)+i}")
            fast = c == 0 or len(pend) > 6
            if pend and (fast or gap in (1, 3)) and not (j == 3 and gap == 1): pend.pop(0)()
            n = 0; rate = 5 if t >= 24 else 3
            while Q and Q[0][0] <= t + gap / 4 and Q[0][1] != "mean" and n < rate:
                Q.pop(0)[1](); n += 1
        while nxt: nxt.pop(0)()
    while Q[0][1] != "mean": Q.pop(0)[1]()
    Q.pop(0)
    for n in range(4):
        mean_mfma(n)
        if pend: pend.pop(0)()
        for _ in range(4):
            if Q: Q.pop(0)[1]()
    while Q: Q.pop(0)[1]()
    for f in pend: f()
    stamp(4)

def stamps_out():
    if not STAMPS: return
    g.wait_all(); stamp(10)
    e(f"s_lshl_b32 s{sT0}, s2, 3"); e(f"s_add_u32 s{sT0}, s{sT0}, s{sW}")
    e(f"s_lshl_b32 s{sT0}, s{sT0}, 7"); e(f"s_add_u32 s{sT0}, s{sT0}, {TS_OFF}")
    e(f"v_mov_b32 v{vT+1}, 0")
    e("s_memtime s[100:101]"); g.wait_all(vm=False); e(f"s_sub_u32 s{sST+18}, s100, s{sST+18}")
    for i in range(20):
        e(f"v_mov_b32 v{vT}, s{sST+i}")
        e(f"buffer_store_dword v{vT}, v{vT+1}, {S4(SWS)}, s{sT0} offen offset:{4*i}")

vTR, vA1, vA2, vA3 = 36, 37, 38, 39
vHS, vCLf, vPF = 11, 12, vPA
def ffn_idle():
    srd(SWD, pWD, 1605632)
    e(f"s_lshr_b32 s{sT1}, s2, 3")
    e(f"s_mul_i32 s{sR2}, s{sT1}, 37")
    e(f"s_lshr_b32 s{sR2}, s{sR2}, 8")
    e(f"s_mul_i32 s{sC2}, s{sR2}, 7")
    e(f"s_sub_u32 s{sC2}, s{sT1}, s{sC2}")
    e(f"s_and_b32 s{sT0}, s2, 1")
    e(f"s_lshl_b32 s{sT0}, s{sT0}, 4")
    e(f"s_add_u32 s{sR2}, s{sR2}, s{sT0}")
    e(f"s_and_b32 s{sT0}, s2, 6")
    e(f"s_lshl_b32 s{sT0}, s{sT0}, 1")
    e(f"s_add_u32 s{sR2}, s{sR2}, s{sT0}")
    e(f"s_lshl_b32 s{sPF}, s{sT1}, 3")
    e(f"s_add_u32 s{sPF}, s{sPF}, s{sW}")
    e(f"s_mul_i32 s{sPF}, s{sPF}, {56*128}")
    e(f"v_min_u32 v{vPF}, 55, v{vL}")
    e(f"v_lshlrev_b32 v{vPF}, 7, v{vPF}")
    e(f"v_bfe_u32 v{vT}, v{vL}, 2, 1")
    e(f"v_bfe_u32 v{vT+1}, v{vL}, 4, 1")
    e(f"v_xor_b32 v{vT}, v{vT}, v{vT+1}")
    e(f"v_and_b32 v{vT+1}, 3, v{vL}")
    e(f"v_lshlrev_b32 v{vT+1}, 4, v{vT+1}")
    e(f"v_lshl_add_u32 v{vSW}, v{vT}, 6, v{vT+1}")
    e(f"v_lshrrev_b32 v{vT}, 3, v{vL}")
    e(f"v_mul_u32_u24 v{vDD0}, 896, v{vT}")
    e(f"v_add_u32 v{vDD0}, v{vDD0}, v{vSW}")
    e(f"v_add_u32 v{vDD1}, {8*896}, v{vDD0}")
    e(f"s_lshl_b32 s{sT0}, s{sC2}, 3")
    e(f"s_add_u32 s{sD0}, s{sT0}, s{sW}")
    e(f"s_and_b32 s{sD1}, s{sW}, 3")
    e(f"s_add_u32 s{sD1}, s{sD1}, s{sT0}")
    e(f"s_add_u32 s{sD1}, s{sD1}, 8")
    e(f"s_lshl_b32 s{sD2}, s{sC2}, 7")
    e(f"s_lshr_b32 s{sD3}, s{sW}, 2")
    e(f"s_mul_i32 s{sD3}, s{sD3}, {56*16*896}")
    e(f"s_add_u32 s{sD3}, s{sD3}, s{sD2}")
    t1 = vT
    e(f"v_lshrrev_b32 v{t1}, 5, v{vL}")
    e(f"v_lshlrev_b32 v{vTR}, 10, v{t1}")
    e(f"v_bfe_u32 v{t1}, v{vL}, 3, 1")
    e(f"v_lshl_or_b32 v{vTR}, v{t1}, 8, v{vTR}")
    e(f"v_lshl_or_b32 v{vTR}, v{t1}, 6, v{vTR}")
    e(f"v_bfe_u32 v{t1}, v{vL}, 2, 1")
    e(f"v_lshl_or_b32 v{vTR}, v{t1}, 7, v{vTR}")
    e(f"v_bfe_u32 v{t1}, v{vL}, 4, 1")
    e(f"v_lshl_or_b32 v{vTR}, v{t1}, 5, v{vTR}")
    e(f"v_and_b32 v{t1}, 1, v{vL}")
    e(f"v_lshl_or_b32 v{vTR}, v{t1}, 4, v{vTR}")
    e(f"v_bfe_u32 v{t1}, v{vL}, 1, 1")
    e(f"v_lshl_or_b32 v{vTR}, v{t1}, 3, v{vTR}")
    e(f"s_and_b32 s{sT0}, s{sW}, 1")
    e(f"s_lshl_b32 s{sT0}, s{sT0}, 6")
    e(f"v_xor_b32 v{vTR}, s{sT0}, v{vTR}")
    e(f"s_lshr_b32 s{sT1}, s{sW}, 2")
    e(f"s_mul_i32 s{sT0}, s{sT1}, {GAM}")
    e(f"v_add_u32 v{vA1}, s{sT0}, v{vTR}")
    e(f"s_lshl_b32 s{sT0}, s{sT1}, 13")
    e(f"s_add_u32 s{sT0}, s{sT0}, {XB}")
    e(f"v_add_u32 v{vA2}, s{sT0}, v{vTR}")
    e(f"s_lshl_b32 s{sT0}, s{sT1}, 14")
    e(f"s_add_u32 s{sT0}, s{sT0}, {LATE}")
    e(f"v_add_u32 v{vA3}, s{sT0}, v{vTR}")
    e(f"s_and_b32 s{sT0}, s{sW}, 1")
    e(f"s_lshl_b32 s{sT0}, s{sT0}, 1")
    e(f"s_lshl_b32 s{sT1}, s{sRB}, 2")
    e(f"s_add_u32 s{sT0}, s{sT0}, s{sT1}")
    e(f"s_mul_i32 s{sT0}, s{sT0}, 112")
    e(f"s_lshl_b32 s{sT1}, s{sCB}, 3")
    e(f"s_add_u32 s{sT0}, s{sT0}, s{sT1}")
    e(f"s_add_u32 s{sHS0}, s{sT0}, s{sW}")
    e(f"s_xor_b32 s{sT1}, s{sW}, 1")
    e(f"s_add_u32 s{sHS1}, s{sT0}, s{sT1}")
    e(f"s_lshl_b32 s{sHS0}, s{sHS0}, 10")
    e(f"s_lshl_b32 s{sHS1}, s{sHS1}, 10")
    e(f"v_add_u32 v{vHS}, {112*1024}, v{vL16}")
def gelu_consts():
    for si in range(2):
        e(f"v_rcp_f32 v{vT+2+si}, v{vG+2*si+1}")
        e(f"v_mul_f32 v{vS2+si}, v{vG+2*si+1}, v{vG+2*si+1}")
    for si in range(2):
        e(f"v_mul_f32 v{vK0+si}, 0xc0135761, v{vT+2+si}")
        e(f"v_mul_f32 v{vT+2+si}, v{vT+2+si}, v{vT+2+si}")
    for si in range(2): e(f"v_mul_f32 v{vT+2+si}, {fhex(0.044715)}, v{vT+2+si}")
    for si in range(2): e(f"v_mul_f32 v{vK1+si}, v{vK0+si}, v{vT+2+si}")
def wd_dma(ldsoff, kind, koff, b):
    if b == 0:
        e(f"s_add_u32 s{sDT}, s{sD1 if kind == 2 else sD0}, {koff}")
        e(f"s_cmp_ge_u32 s{sDT}, 56")
        e(f"s_cselect_b32 s{sT4}, {0 if kind == 1 else -56}, {56 if kind == 1 else 0}")
        e(f"s_add_u32 s{sDT}, s{sDT}, s{sT4}")
        e(f"s_mul_i32 s{sDT}, s{sDT}, {16*896}")
        e(f"s_add_u32 s{sDT}, s{sDT}, s{sD3 if kind == 2 else sD2}")
    return dma(sMX, ldsoff + b * 1024, vDD0 + b, SWD, f"s{sDT}")
wtok = {}
def wd_chunk(c):
    i = c - 7; st = (c % 3) * STG
    L = []
    if c == 7 and "nopf" not in OPT: L.append(lambda: e(f"buffer_load_dword v{vDUM}, v{vPF}, {S4(SWD)}, s{sPF} offen"))
    for kind, base in ((0, st), (1, GAM + st), (2, XB + st)):
        for b in range(2):
            L.append(lambda kind=kind, base=base, b=b: wtok.__setitem__(c, wd_dma(base, kind, 12 * i, b)))
    return L
phase1(False, vCLf, MISC, lambda: None, ffn_idle, [], [(27, f) for f in rec(gelu_consts)], wd_chunk)

def wdr(k):
    k %= 48
    return 128 + 4 * k if k < 32 else 64 + 4 * (k - 32)
def wd_reads(i):
    st = ((7 + i) % 3) * STG
    return [lambda k=k: tr(wdr(12 * i + k), vA1, st + k * 2048) for k in range(8)] + \
           [lambda k=k: tr(wdr(12 * i + 8 + k), vA2, st + k * 2048) for k in range(4)]
def gelu_tile(n, fill):
    ui, si = SNAKE[n]
    A = acc(ui, si); Q = vT; PK = SR if n & 1 else 28
    sel = f" op_sel:[0,{si},{si}] op_sel_hi:[1,{si},{si}]"
    ops = []
    for j in range(0, 8, 2): ops.append(f"v_pk_mul_f32 {pr(Q+j)}, {pr(A+j)}, {pr(A+j)}")
    for j in range(0, 8, 2): ops.append(f"v_pk_fma_f32 {pr(Q+j)}, {pr(Q+j)}, {pr(vK1)}, {pr(vK0)}" + sel)
    for j in range(0, 8, 2): ops.append(f"v_pk_mul_f32 {pr(Q+j)}, {pr(Q+j)}, {pr(A+j)}")
    for j in range(8): ops.append(f"v_exp_f32 v{Q+j}, v{Q+j}")
    for j in range(0, 8, 2): ops.append(f"v_pk_mul_f32 {pr(A+8+j)}, {pr(A+8+j)}, {pr(A+j)}")
    for j in range(0, 8, 2): ops.append(f"v_pk_fma_f32 {pr(Q+j)}, {pr(Q+j)}, {pr(vS2)}, {pr(vS2)}" + sel)
    for j in range(8): ops.append(f"v_rcp_f32 v{Q+j}, v{Q+j}")
    for j in range(0, 8, 2): ops.append(f"v_pk_mul_f32 {pr(A+8+j)}, {pr(A+8+j)}, {pr(Q+j)}")
    for j in range(4): ops.append(f"v_cvt_pk_bf16_f32 v{PK+j}, v{A+8+2*j}, v{A+8+2*j+1}")
    per = max(1, len(ops) // max(1, len(fill)))
    for i, o in enumerate(ops):
        e(o)
        if fill and i % per == per - 1: fill.pop(0)()
    while fill: fill.pop(0)()
    return e(f"buffer_store_dwordx4 {vr(PK,4)}, v{vHS if si else vL16}, {S4(SWS)}, s{sHS1 if ui else sHS0} offen sc1")
late_dma = [lambda b=b: wd_dma(LATE, 0, 48, b) for b in range(2)] + [lambda b=b: wd_dma(LATE + 16384, 1, 48, b) for b in range(2)]
if "epi2" in OPT:
    gelu_tile(0, []); gelu_tile(1, [])
    g.wait(wtok[8]); e("s_barrier")
    gelu_tile(2, wd_reads(0)); gelu_tile(3, wd_reads(1))
    stamp(5)
    g.wait(wtok[9], g.lastlg()); e("s_barrier")
    th = g.lastvm()
    for f in wd_chunk(10) + late_dma: f()
    for f in wd_reads(2): f()
else:
    gelu_tile(0, [])
    g.wait(wtok[8]); e("s_barrier")
    gelu_tile(1, wd_reads(0))
    gelu_tile(2, wd_reads(1))
    g.wait(wtok[9], g.lastlg()); e("s_barrier")
    fill = []
    rd = wd_reads(2); dm = wd_chunk(10) + late_dma
    while rd or dm:
        if dm: fill.append(dm.pop(0))
        if rd: fill.append(rd.pop(0))
    th = gelu_tile(3, fill)
    stamp(5)
t_wd = g.lastvm()
ACC2, HF = 48, 32
vH0, vH1, vXO, vYW, vYR0, vYR1, vYR2 = 5, 6, 7, 8, 9, 10, 12
vWA, vWP, vWPL, vTQ, vTB = 1, 2, 3, 4, 15
XV = 28
vTR2, vA32 = 18, 11
e(f"s_lshr_b32 s{sT0}, s{sR2}, 1")
e(f"s_lshl_b32 s{sT0}, s{sT0}, 11")
e(f"s_add_u32 s{sT0}, s{sT0}, {FL_OFF}")
e(f"v_lshl_add_u32 v{vT}, v{vL}, 7, s{sT0}")
poll_setup(vT, 14)
g.wait(th); e("s_barrier")
flag_store()
stamp(6)
e(f"s_lshr_b32 s{sT1}, s{sW}, 2")
e(f"s_bfe_u32 s{sT0}, s{sW}, 0x10001")
e(f"s_lshl_b32 s{sK0}, s{sR2}, 1")
e(f"s_add_u32 s{sK0}, s{sK0}, s{sT0}")
e(f"s_mul_i32 s{sHO}, s{sK0}, 112")
e(f"s_mul_i32 s{sT0}, s{sT1}, 56")
e(f"s_add_u32 s{sHO}, s{sHO}, s{sT0}")
e(f"s_and_b32 s{sT0}, s{sW}, 1")
e(f"s_lshl_b32 s{sT0}, s{sT0}, 2")
e(f"s_add_u32 s{sHO}, s{sHO}, s{sT0}")
e(f"s_lshl_b32 s{sT0}, s{sC2}, 3")
e(f"s_add_u32 s{sHO}, s{sHO}, s{sT0}")
e(f"s_lshl_b32 s{sHO}, s{sHO}, 10")
e(f"s_mov_b32 s{sCH}, s{sC2}")
e(f"s_lshl_b32 s{sMW}, s{sW}, 12")
e(f"s_lshr_b32 s{sT0}, s{sW}, 1")
e(f"s_lshl_b32 s{sT0}, s{sT0}, 13")
e(f"v_add_u32 v{vH0}, s{sT0}, v{vL16}")
e(f"v_add_u32 v{vH1}, 0x10000, v{vH0}")
e(f"s_add_u32 s{sT0}, s{sT0}, {LATE}")
e(f"v_add_u32 v{vTR2}, s{sT0}, v{vTR}")
e(f"v_mov_b32 v{vA32}, v{vA3}")
YIM, RED = 98304, 0
def fin_setup():
    srd(SO, pOUT, 1835008)
    i_, hf, tt = vT, vT + 1, vT + 2
    e(f"v_and_b32 v{i_}, 31, v{vL}")
    e(f"v_lshrrev_b32 v{hf}, 5, v{vL}")
    e(f"v_mul_u32_u24 v{vXO}, 57344, v{i_}")
    e(f"v_lshl_add_u32 v{vXO}, v{hf}, 4, v{vXO}")
    e(f"s_and_b32 s{sT1}, s{sW}, 1")
    e(f"s_lshl_b32 s{sT1}, s{sT1}, 5")
    e(f"s_lshr_b32 s{sT3}, s{sW}, 2")
    e(f"s_lshl_b32 s{sT2}, s{sT3}, 4")
    e(f"s_add_u32 s{sT2}, s{sT2}, s{sT1}")
    e(f"s_lshl_b32 s{sT0}, s{sC2}, 6")
    e(f"s_add_u32 s{sT0}, s{sT0}, s{sT2}")
    e(f"s_lshl_b32 s{sT0}, s{sT0}, 1")
    e(f"s_mul_i32 s{sK1}, s{sK0}, 896")
    e(f"s_add_u32 s{sK1}, s{sK1}, s{sT0}")
    tk["x"] = e(f"buffer_load_dwordx4 {vr(XV,4)}, v{vXO}, {S4(SX)}, s{sK1} offen")
    e(f"s_cmp_ge_u32 s{sC2}, 4")
    e(f"s_cselect_b32 s{sMIR}, 1, 0")
    e(f"s_cselect_b64 vcc, -1, 0")
    e(f"v_lshlrev_b32 v{tt}, 6, v{i_}")
    e(f"v_add_u32 v{tt}, s{sK0}, v{tt}")
    e(f"v_sub_u32 v{tt+1}, 0x800, v{tt}")
    e(f"v_and_b32 v{tt+1}, 0x7ff, v{tt+1}")
    e(f"v_cndmask_b32 v{tt}, v{tt}, v{tt+1}, vcc")
    e(f"v_lshrrev_b32 v{tt}, 5, v{tt}")
    e(f"v_cvt_f32_u32 v{vTQ}, v{tt}")
    e(f"v_mul_u32_u24 v{tt}, v{tt}, v{hf}")
    e(f"v_mul_f32 v{vTQ}, {fhex(1/64)}, v{vTQ}")
    e(f"s_lshl_b32 s{sT0}, s{sT3}, 1")
    e(f"v_subrev_u32 v{tt}, s{sT0}, v{tt}")
    e(f"v_cvt_f32_i32 v{vTB}, v{tt}")
    e(f"v_mul_f32 v{vTB}, {fhex(1/8)}, v{vTB}")
    e(f"s_bfe_u32 s{sT0}, s{sW}, 0x10001")
    e(f"s_lshl_b32 s{sT0}, s{sT0}, 13")
    e(f"s_add_u32 s{sT0}, s{sT0}, {YIM}")
    e(f"v_lshl_add_u32 v{tt}, v{i_}, 8, s{sT0}")
    e(f"v_and_b32 v{tt+1}, 15, v{vL}")
    e(f"s_lshr_b32 s{sT1}, s{sT1}, 2")
    e(f"v_lshl_add_u32 v{tt+2}, v{hf}, 1, s{sT1}")
    e(f"v_xor_b32 v{tt+2}, v{tt+2}, v{tt+1}")
    e(f"v_lshl_add_u32 v{vYW}, v{tt+2}, 4, v{tt}")
    e(f"s_lshl_b32 s{sT0}, s{sT3}, 14")
    e(f"v_add_u32 v{vYW}, s{sT0}, v{vYW}")
    e(f"s_lshr_b32 s{sT2}, s{sT2}, 2")
    e(f"v_lshl_add_u32 v{tt+2}, v{hf}, 1, s{sT2}")
    e(f"v_sub_u32 v{tt+3}, 14, v{tt+2}")
    e(f"v_cndmask_b32 v{tt+2}, v{tt+2}, v{tt+3}, vcc")
    e(f"v_add_u32 v{tt+3}, 2, v{tt+2}")
    e(f"v_and_b32 v{tt+3}, 15, v{tt+3}")
    e(f"v_xor_b32 v{tt+2}, v{tt+2}, v{tt+1}")
    e(f"v_xor_b32 v{tt+3}, v{tt+3}, v{tt+1}")
    e(f"v_lshl_add_u32 v{vYR0}, v{tt+2}, 4, v{tt}")
    e(f"v_xor_b32 v{vYR1}, 16, v{vYR0}")
    e(f"v_lshl_add_u32 v{vYR2}, v{tt+3}, 4, v{tt}")
def wop_setup():
    e(f"s_sub_u32 s{sT0}, 64, s{sK0}")
    e(f"s_sub_u32 s{sT1}, 6, s{sC2}")
    e(f"s_cmp_lg_u32 s{sMIR}, 0")
    e(f"s_cselect_b32 s{sT0}, s{sT0}, s{sK0}")
    e(f"s_cselect_b32 s{sT1}, s{sT1}, s{sC2}")
    e(f"s_and_b32 s{sT0}, s{sT0}, 31")
    e(f"s_lshl_b32 s{sG0}, s{sT0}, 16")
    e(f"s_lshl_b32 s{sT1}, s{sT1}, 7")
    e(f"s_add_u32 s{sG0}, s{sG0}, s{sT1}")
    e(f"s_lshr_b32 s{sT0}, s{sW}, 2")
    e(f"s_lshl_b32 s{sT0}, s{sT0}, 15")
    e(f"s_add_u32 s{sG0}, s{sG0}, s{sT0}")
    e(f"s_and_b32 s{sT0}, s{sW}, 1")
    e(f"s_lshl_b32 s{sT0}, s{sT0}, 14")
    e(f"s_add_u32 s{sG0}, s{sG0}, s{sT0}")
    e(f"s_add_u32 s{sG0}, s{sG0}, {W_OFF}")
    e(f"s_add_u32 s{sG1}, s{sG0}, 128")
    e(f"v_lshrrev_b32 v{vT}, 3, v{vL}")
    e(f"v_lshl_add_u32 v{vWA}, v{vT}, 9, v{vSW}")
    e(f"s_lshl_b32 s{sT0}, s{sMIR}, 5")
    e(f"v_cmp_gt_u32 vcc, s{sT0}, v{vL}")
    e(f"v_lshlrev_b32 v{vT}, 9, v{vL}")
    e(f"v_mov_b32 v{vWP}, {BIG}")
    e(f"v_cndmask_b32 v{vWP}, v{vWP}, v{vT}, vcc")
    e(f"v_bfe_u32 v{vT+1}, v{vL}, 1, 1")
    e(f"v_lshlrev_b32 v{vT+1}, 6, v{vT+1}")
    e(f"v_lshl_add_u32 v{vT}, v{vL}, 7, v{vT+1}")
    e(f"s_add_u32 s{sT0}, s{sMW}, {LATE}")
    e(f"v_add_u32 v{vT}, s{sT0}, v{vT}")
    e(f"v_mov_b32 v{vWPL}, 0x40000")
    e(f"v_cndmask_b32 v{vWPL}, v{vWPL}, v{vT}, vcc")
fin_setup(); wop_setup()
if "epi2" in OPT:
    g.wait(t_wd, g.lastlg()); e("s_barrier")
tp = poll_issue()
for f in wd_reads(3): f()
htok = {}
def h_ops(c):
    def one(n):
        htok[c] = dma(sMW, (c % 4) * 32768, vL16, SWS, f"s{sHO}", ioff=n * 1024, sc1=True, both=True)
        if n == 3:
            e(f"s_add_u32 s{sCH}, s{sCH}, 1")
            e(f"s_cmp_eq_u32 s{sCH}, 7")
            e(f"s_cselect_b32 s{sT4}, -6, 1")
            e(f"s_lshl_b32 s{sT4}, s{sT4}, 13")
            e(f"s_add_u32 s{sHO}, s{sHO}, s{sT4}")
    return [lambda n=n: one(n) for n in range(4)]
poll_check(tp)
g.wait(g.lastlg()); e("s_barrier")
stamp(7)
for f in h_ops(0): f()
e("s_barrier")
for f in h_ops(1): f()
e(f"v_lshrrev_b32 v{vT}, 1, v{vL}")
e(f"v_lshlrev_b32 v{vT}, 11, v{vT}")
e(f"v_and_b32 v{vT+1}, 1, v{vL}")
e(f"v_lshl_add_u32 v{vT}, v{vT+1}, 7, v{vT}")
e(f"v_add_u32 v{vT}, {FL_OFF + 14*128}, v{vT}")
poll_setup(vT, 32)
g.wait(htok[0]); e("s_barrier")
stamp(8)
def hread(k):
    c, n = divmod(k, 8); st = c % 4
    return e(f"ds_read_b128 {vr(HF+4*(k%4),4)}, v{vH0 + (st >> 1)} offset:{(st & 1)*32768 + n*1024}")
FB, WA, YA = wdr(8), wdr(12), wdr(16)
PV, YP, YV, XU = wdr(20), wdr(21), wdr(26), wdr(28)
def f64_gen():
    for j in range(16):
        for h in range(2):
            s2 = 16 * (j // 4) + 2 * (j % 4) + h
            if s2: e(f"v_fmamk_f32 v{vT+h}, v{vTQ}, {fhex(float(s2))}, v{vTB}")
            e(f"v_cos_f32 v{vT+2+h}, v{vT+h if s2 else vTB}")
        e(f"v_cvt_pk_bf16_f32 v{FB+j}, v{vT+2}, v{vT+3}")
def x_unpack():
    for j in range(8):
        if j & 1: e(f"v_and_b32 v{XU+j}, 0xffff0000, v{XV+j//2}")
        else: e(f"v_lshlrev_b32 v{XU+j}, 16, v{XV+j//2}")
    e(f"s_lshl_b32 s{sT0}, s{sW}, 11")
    e(f"v_add_u32 v{vT+6}, s{sT0}, v{vL16}")
    e(f"v_xor_b32 v{vT+7}, 8192, v{vT+6}")
    for q in range(1, 4): e(f"v_xor_b32 v{vT+q}, {((q >> 1)*4 + (q & 1)) << 4}, v{vYW}")
def w_ops():
    def one(n):
        tk["w"] = dma(sMW, LATE + n * 1024, vWA, SWS, f"s{sG0}", sc1=True)
        e(f"s_add_u32 s{sG0}, s{sG0}, 4096")
    return [lambda n=n: one(n) for n in range(4)]
rt = {}
for k in range(3): rt[k] = hread(k)
late = [lambda k=k: tr(wdr(48 + k), vA32, k * 2048) for k in range(8)]
pend = h_ops(2) + h_ops(3) + [lambda: tk.__setitem__("p2", poll_issue())]
Q = [(12, f) for f in rec(f64_gen)] + [(40, f) for f in rec(x_unpack)]
for k in range(56):
    c, n = divmod(k, 8)
    if n == 5:
        if c == 2: poll_check(tk["p2"])
        if c == 5:
            g.wait(tk["pv"])
            g.wait(e(f"ds_write_b16 v{vWPL}, v{PV}"))
        if c == 6: g.wait(t_yw)
        g.wait(htok.get(c + 1)); e("s_barrier")
        if "l2stamp" in OPT and c < 6: stamp(11 + c)
        if 1 <= c <= 3: pend += h_ops(c + 3)
        if c == 2: pend += w_ops()
        if c == 3: pend += [lambda: tk.__setitem__("pv", e(f"buffer_load_ushort v{PV}, v{vWP}, {S4(SWS)}, s{sG1} offen sc1"))]
    g.wait(rt[k])
    mf(ACC2, wdr(k), HF + 4 * (k % 4), k == 0)
    if k + 3 < 56: rt[k + 3] = hread(k + 3)
    if pend: pend.pop(0)()
    if k >= 8 and late: late.pop(0)()
    for _ in range(3):
        if Q and Q[0][0] <= k: Q.pop(0)[1]()
    if k == 45:
        assert not Q
        for q in range(4): tw = tr(WA + 4 * q, vTR2, q * 2048)
    if k == 47:
        g.wait(tw)
        for q in range(4): mf(YA, WA + 4 * q, FB + 4 * q, q == 0)
    if k == 51:
        for q in range(4):
            t_yw = e(f"ds_write_b128 v{vT+q if q else vYW}, {vr(YA+4*q,4)}")
    if k == 53:
        for p in range(2):
            e(f"ds_read_b128 {vr(YP+10*p,4)}, v{vYR0} offset:{p*16384}")
            e(f"ds_read_b128 {vr(YP+10*p+4,4)}, v{vYR1} offset:{p*16384}")
            t_yr = e(f"ds_read_b32 v{YP+10*p+8}, v{vYR2} offset:{p*16384}")
stamp(9)
g.wait(t_yr)
e(f"s_cmp_lg_u32 s{sMIR}, 0")
e("s_cbranch_scc1 L_mir")
snap = g.snapshot()
for j in range(8): e(f"v_add_f32 v{YV+j}, v{YP+j}, v{YP+10+j}")
e("s_branch L_mirj")
g.label("L_mir")
g.restore(snap)
for j in range(8): e(f"v_add_f32 v{YV+j}, v{YP+8-j}, v{YP+18-j}")
g.label("L_mirj")
e(f"s_cmp_ge_u32 s{sW}, 4")
e("s_cbranch_scc1 L_hi")
snap = g.snapshot()
e(f"ds_write_b128 v{vT+6}, {vr(ACC2+8,4)}")
e(f"ds_write_b128 v{vT+6}, {vr(ACC2+12,4)} offset:1024")
e("s_branch L_join")
g.label("L_hi")
g.restore(snap)
e(f"ds_write_b128 v{vT+6}, {vr(ACC2,4)}")
e(f"ds_write_b128 v{vT+6}, {vr(ACC2+4,4)} offset:1024")
for j in range(0, 8, 2): e(f"v_pk_mov_b32 {pr(ACC2+j)}, {pr(ACC2+8+j)}, {pr(ACC2+8+j)} op_sel:[0,1]")
g.label("L_join")
e(f"s_mov_b32 s14, 0xbfb8aa3b")
g.wait_all(vm=False); e("s_barrier")
e(f"ds_read_b128 {vr(HF,4)}, v{vT+7}")
e(f"ds_read_b128 {vr(HF+4,4)}, v{vT+7} offset:1024")
g.wait_all(vm=False)
Q_ = HF + 8
for j in range(0, 8, 2): e(f"v_pk_add_f32 {pr(ACC2+j)}, {pr(ACC2+j)}, {pr(HF+j)}")
for j in range(0, 8, 2): e(f"v_pk_mul_f32 {pr(Q_+j)}, {pr(ACC2+j)}, s[14:15] op_sel_hi:[1,0]")
for j in range(8): e(f"v_exp_f32 v{Q_+j}, v{Q_+j}")
for j in range(0, 8, 2): e(f"v_pk_mul_f32 {pr(YV+j)}, {pr(YV+j)}, {pr(ACC2+j)}")
for j in range(0, 8, 2): e(f"v_pk_add_f32 {pr(Q_+j)}, {pr(Q_+j)}, 1.0 op_sel_hi:[1,0]")
for j in range(8): e(f"v_rcp_f32 v{Q_+j}, v{Q_+j}")
for j in range(0, 8, 2): e(f"v_pk_fma_f32 {pr(XU+j)}, {pr(YV+j)}, {pr(Q_+j)}, {pr(XU+j)}")
for j in range(4): e(f"v_cvt_pk_bf16_f32 v{HF+j}, v{XU+2*j}, v{XU+2*j+1}")
e(f"buffer_store_dwordx4 {vr(HF,4)}, v{vXO}, {S4(SO)}, s{sK1} offen")
stamps_out()
FIX = [int(a[3:]) for a in OPT if a.startswith("fix")]
if FIX:
    g.label("L_fix")
    e("s_memrealtime s[100:101]"); e("s_waitcnt lgkmcnt(0)")
    e(f"s_sub_u32 s100, s100, s{sNON}")
    e(f"s_cmp_lt_u32 s100, {FIX[0]*100}")
    e("s_cbranch_scc1 L_fix")
e("s_endpgm")

g.raw(".p2align 3")
g.label("L_dft")
g.restore(snap_role)
FA, FBb, F00, F01 = 192, 208, 224, 240
RR = 160
vCT, vOW, vOR, vOG, vCLd, vRX = 40, 16, 48, 53, 52, 19
def const_dma():
    e(f"s_bitcmp1_b32 s{sW}, 0")
    srd_sel(SW1, pSS, pCS, 8388608)
    e(f"v_lshrrev_b32 v{vT}, 2, v{vL}")
    e(f"v_and_b32 v{vT+1}, 3, v{vL}")
    e(f"v_lshlrev_b32 v{vT+1}, 4, v{vT+1}")
    e(f"v_lshl_add_u32 v{vT}, v{vT}, 18, v{vT+1}")
    e(f"s_lshl_b32 s{sT0}, s{sRB}, 2")
    e(f"s_lshr_b32 s{sT1}, s{sW}, 1")
    e(f"s_add_u32 s{sT0}, s{sT0}, s{sT1}")
    e(f"s_lshl_b32 s{sT0}, s{sT0}, 12")
    dma(sMX, MISC, vT, SW1, f"s{sT0}")
    e(f"s_add_u32 s{sT0}, s{sT0}, {16 << 18}")
    dma(sMX, MISC + 1024, vT, SW1, f"s{sT0}")
def dft_idle():
    e(f"v_lshrrev_b32 v{vT}, 5, v{vL}")
    e(f"v_lshlrev_b32 v{vCT}, 9, v{vT}")
    e(f"v_bfe_u32 v{vT}, v{vL}, 2, 2")
    e(f"v_lshl_or_b32 v{vCT}, v{vT}, 6, v{vCT}")
    e(f"v_bfe_u32 v{vT}, v{vL}, 4, 1")
    e(f"v_lshl_or_b32 v{vCT}, v{vT}, 5, v{vCT}")
    e(f"v_and_b32 v{vT}, 3, v{vL}")
    e(f"v_lshl_or_b32 v{vCT}, v{vT}, 3, v{vCT}")
    e(f"s_and_b32 s{sT0}, s{sW}, 1")
    e(f"s_mul_i32 s{sT0}, s{sT0}, {8192+2048}")
    e(f"s_add_u32 s{sT0}, s{sT0}, {MISC}")
    e(f"v_add_u32 v{vCT}, s{sT0}, v{vCT}")
    e(f"v_xor_b32 v{vCT+1}, 2048, v{vCT}")
    e(f"s_bitcmp1_b32 s{sW}, 0")
    e(f"s_cselect_b32 s{sG0}, 0x80008000, 0")
    e(f"s_xor_b32 s{sG1}, s{sG0}, 0x80008000")
    e(f"v_and_b32 v{vT}, 31, v{vL}")
    e(f"v_lshrrev_b32 v{vT+1}, 5, v{vL}")
    e(f"s_lshr_b32 s{sT0}, s{sW}, 1")
    e(f"s_lshl_b32 s{sT0}, s{sT0}, 2")
    e(f"v_or_b32 v{vT+1}, s{sT0}, v{vT+1}")
    e(f"v_and_b32 v{vT+2}, 7, v{vL}")
    e(f"v_xor_b32 v{vT+1}, v{vT+1}, v{vT+2}")
    e(f"v_lshlrev_b32 v{vT+1}, 4, v{vT+1}")
    e(f"v_lshl_or_b32 v{vOW}, v{vT}, 11, v{vT+1}")
    e(f"s_and_b32 s{sT0}, s{sW}, 1")
    e(f"s_lshl_b32 s{sT1}, s{sT0}, 9")
    e(f"v_add_u32 v{vOW}, s{sT1}, v{vOW}")
    e(f"v_xor_b32 v{vOW+1}, 32, v{vOW}")
    e(f"s_lshl_b32 s{sT0}, s{sT0}, 6")
    e(f"v_xor_b32 v{vOR}, s{sT0}, v{vL16}")
    e(f"s_lshl_b32 s{sT0}, s{sW}, 13")
    e(f"v_add_u32 v{vOR}, s{sT0}, v{vOR}")
    for n in range(1, 4): e(f"v_xor_b32 v{vOR+n}, {n << 4}, v{vOR}")
    e(f"v_lshrrev_b32 v{vT}, 4, v{vL}")
    e(f"v_and_b32 v{vT+1}, 15, v{vL}")
    e(f"v_lshlrev_b32 v{vT+1}, 4, v{vT+1}")
    e(f"v_lshl_add_u32 v{vOG}, v{vT}, 9, v{vT+1}")
    e(f"s_lshl_b32 s{sR2}, s{sW}, 18")
    e(f"s_lshl_b32 s{sT0}, s{sRB}, 11")
    e(f"s_add_u32 s{sR2}, s{sR2}, s{sT0}")
    e(f"s_sub_u32 s{sT0}, s{sCB}, 14")
    e(f"s_lshl_b32 s{sT0}, s{sT0}, 8")
    e(f"s_add_u32 s{sR2}, s{sR2}, s{sT0}")
    e(f"s_add_u32 s{sR2}, s{sR2}, {W_OFF}")
    e(f"s_lshl_b32 s{sC2}, s{sW}, 9")
    e(f"s_add_u32 s{sC2}, s{sC2}, {XB + STG}")
    e(f"v_lshrrev_b32 v{vRX}, 5, v{vL}")
    e(f"v_lshl_add_u32 v{vRX}, v{vRX}, 5, s{sC2}")
def const_read():
    for si in range(2):
        for q in range(2):
            tr(FA + si * 8 + q * 4, vCT, si * 4096 + q * 1024, step=256)
            tr(FBb + si * 8 + q * 4, vCT + 1, si * 4096 + q * 1024, step=256)
def const_sign():
    for j in range(16):
        e(f"v_xor_b32 v{F00+j}, s{sG0}, v{FA+j}")
        e(f"v_xor_b32 v{F01+j}, s{sG1}, v{FBb+j}")
def r_exchange():
    e(f"v_lshl_add_u32 v{vT}, v{vROW}, 2, s{sC2}")
    for si in range(2): e(f"v_rcp_f32 v{vG+2*si+1}, v{vG+2*si+1}")
    for si in range(2): e(f"ds_write_b32 v{vT}, v{vG+2*si+1} offset:{si*128}")
def r_read():
    for si in range(2):
        for q in range(4):
            tk["rr", si] = e(f"ds_read_b128 {vr(RR+si*16+q*4,4)}, v{vRX} offset:{si*128 + (q >> 1)*64 + (q & 1)*16}")
phase1(True, vCLd, STG, const_dma, dft_idle,
       [(8, f) for f in rec(const_read)] + [(11, f) for f in rec(const_sign)],
       [(27, f) for f in rec(r_exchange)], lambda c: [])
r_read()
def zf(ui, si): return 128 + (ui * 2 + si) * 8
for si in range(2):
    g.wait(tk["rr", si])
    for ui in range(2):
        A = acc(ui, si)
        for j in range(0, 16, 2): e(f"v_pk_mul_f32 {pr(A+j)}, {pr(A+j)}, {pr(RR+si*16+j)}")
        for j in range(8): e(f"v_cvt_pk_bf16_f32 v{zf(ui,si)+j}, v{A+2*j}, v{A+2*j+1}")
for si in range(2):
    for q in range(2):
        mf(acc(0, si), zf(0, si) + 4 * q, F00 + si * 8 + 4 * q, q == 0)
        mf(acc(1, si), zf(0, si) + 4 * q, FBb + si * 8 + 4 * q, q == 0)
    for q in range(2):
        mf(acc(1, si), zf(1, si) + 4 * q, FA + si * 8 + 4 * q, False)
        mf(acc(0, si), zf(1, si) + 4 * q, F01 + si * 8 + 4 * q, False)
for si in range(2):
    for part in range(2):
        A = acc(part, si); PK = RR + (si * 2 + part) * 8
        for j in range(8): e(f"v_cvt_pk_bf16_f32 v{PK+j}, v{A+2*j}, v{A+2*j+1}")
        for q in range(2):
            e(f"ds_write_b128 v{vOW+q}, {vr(PK+4*q,4)} offset:{part*1024 + si*256}")
g.wait_all(vm=False); e("s_barrier")
tr_ = {}
for n in range(4):
    for part in range(2):
        tr_[n, part] = e(f"ds_read_b128 {vr(64+(n*2+part)*4,4)}, v{vOR+n} offset:{n*2048 + part*1024}")
for n in range(4):
    for part in range(2):
        g.wait(tr_[n, part])
        e(f"buffer_store_dwordx4 {vr(64+(n*2+part)*4,4)}, v{vOG}, {S4(SWS)}, s{sR2} offen sc1")
        e(f"s_add_u32 s{sR2}, s{sR2}, 32768")
stamp(5)
g.wait_all(); e("s_barrier")
flag_store()
stamps_out()
g.label("L_end")
e("s_endpgm")
g.raw(f""".section .rodata,"a"
.p2align 6
.amdhsa_kernel {KN}
  .amdhsa_next_free_vgpr 256
  .amdhsa_next_free_sgpr 102
  .amdhsa_accum_offset 256
  .amdhsa_group_segment_fixed_size 0
  .amdhsa_kernarg_size 96
  .amdhsa_user_sgpr_count 2
  .amdhsa_user_sgpr_kernarg_segment_ptr 1
  .amdhsa_system_sgpr_workgroup_id_x 1
.end_amdhsa_kernel""")
open(OUT, "w").write("\n".join(g.out) + "\n")
print("lines", len(g.out), "nops", g.nops)
```
